```python
import torch

def _softmax(x, axis=-1):
    return torch.softmax(x, dim=axis)

def _gelu(x):
    return torch.nn.functional.gelu(x, approximate='tanh')

def _silu(x):
    return torch.nn.functional.silu(x)

def _sigmoid(x):
    return torch.sigmoid(x)

def _layernorm(x, axis=-1, eps=1e-05):
    m = x.mean(dim=axis, keepdim=True)
    v = x.var(dim=axis, keepdim=True, unbiased=False)
    return (x - m) / torch.sqrt(v + eps)

def _scatter_add(tgt, idx, src, axis=0):
    return tgt.clone().index_add_(axis, idx, src)

def _segment_sum(src, seg, n):
    out = torch.zeros((n,) + src.shape[1:], dtype=src.dtype)
    return out.index_add_(0, seg, src)

def _pad(x, pw):
    flat = tuple((v for pair in reversed(pw) for v in pair))
    return torch.nn.functional.pad(x, flat)
kernel_name = 'parallel_sum__memory_aug_recurrent_mem_tr__geglu_ffn__prompt'

def setup_inputs():

    _w = lambda a: (lambda t: t.to(torch.bfloat16) if t.is_floating_point() else t)(torch.as_tensor(a))

    def _A_setup():
        B, S, Dm = (1, 2048, 640)
        H, Dh = (32, 192)
        M, seg = (8, 32)
        seg = min(seg, S)
        S = S // seg * seg
        return {'x': _w((lambda *s: torch.randn(*s, dtype=torch.bfloat16) * 0.05)(B, S, Dm)), 'mem0': _w((lambda *s: torch.randn(*s, dtype=torch.bfloat16) * 1.6)(B, M, Dm)), 'Wq': _w((lambda *s: torch.randn(*s, dtype=torch.bfloat16) * 0.8)(Dm, H, Dh) * Dm ** (-0.5)), 'Wk': _w((lambda *s: torch.randn(*s, dtype=torch.bfloat16) * 0.8)(Dm, H, Dh) * Dm ** (-0.5)), 'Wv': _w((lambda *s: torch.randn(*s, dtype=torch.bfloat16) * 1.6)(Dm, H, Dh) * Dm ** (-0.5)), 'Wo': _w((lambda *s: torch.randn(*s, dtype=torch.bfloat16) * 1.6)(H, Dh, Dm) * (H * Dh) ** (-0.5)), 'seg_len': seg}
    _A_in = _A_setup()

    def _B_setup():
        B, S, D, F = (1, 2048, 640, 1536)
        return {'x': _w((lambda *s: torch.randn(*s, dtype=torch.bfloat16) * 0.05)(B, S, D)), 'w_gate': _w((lambda *s: torch.randn(*s, dtype=torch.bfloat16) * 0.05)(D, F)), 'w_up': _w((lambda *s: torch.randn(*s, dtype=torch.bfloat16) * 0.05)(D, F)), 'w_down': _w((lambda *s: torch.randn(*s, dtype=torch.bfloat16) * 0.05)(F, D))}
    _B_in = _B_setup()
    return {'A_x': _A_in['x'], 'A_mem0': _A_in['mem0'], 'A_Wq': _A_in['Wq'], 'A_Wk': _A_in['Wk'], 'A_Wv': _A_in['Wv'], 'A_Wo': _A_in['Wo'], 'A_seg_len': _A_in['seg_len'], 'B_x': _B_in['x'], 'B_w_gate': _B_in['w_gate'], 'B_w_up': _B_in['w_up'], 'B_w_down': _B_in['w_down']}

def reference(A_x, A_mem0, A_Wq, A_Wk, A_Wv, A_Wo, A_seg_len, B_x, B_w_gate, B_w_up, B_w_down):

    def _A_ref(x, mem0, Wq, Wk, Wv, Wo, seg_len):
        B, S, Dm = x.shape
        H, Dh = (Wq.shape[1], Wq.shape[2])
        M = mem0.shape[1]
        scale = Dh ** (-0.5)
        n_seg = S // seg_len
        L = M + seg_len
        idx = torch.arange(L)
        mask = (idx[:, None] < M) | (idx[:, None] >= idx[None, :])
        mem = mem0
        outs = []
        for s in range(n_seg):
            xs = x[:, s * seg_len:(s + 1) * seg_len, :].clone()
            h = torch.concatenate([mem, xs], axis=1)
            q = torch.einsum('btd,dhe->bhte', h, Wq)
            k = torch.einsum('btd,dhe->bhte', h, Wk)
            v = torch.einsum('btd,dhe->bhte', h, Wv)
            scores = torch.einsum('bhqe,bhke->bhqk', q, k) * scale
            scores = torch.where(mask[None, None], scores, -1000000000.0)
            p = _softmax(scores, axis=-1)
            o = torch.einsum('bhqk,bhke->bhqe', p, v)
            o = torch.einsum('bhte,hed->btd', o, Wo)
            mem = o[:, :M, :].clone()
            outs.append(o[:, M:, :])
        return torch.concatenate(outs, axis=1)

    def _B_ref(x, w_gate, w_up, w_down):
        return _gelu(x @ w_gate) * (x @ w_up) @ w_down
    x = A_x
    xn = _layernorm(x, axis=-1)
    return x + _A_ref(xn, A_mem0, A_Wq, A_Wk, A_Wv, A_Wo, A_seg_len) + _B_ref(xn, B_w_gate, B_w_up, B_w_down)
```

```python
class A:
    def __init__(self):
        self.L = []
        self.nlab = 0
    def __call__(self, s=''):
        for line in s.split('\n'):
            line = line.strip()
            if line == '': continue
            if line.endswith(':') or line.startswith('.') :
                self.L.append(line)
            else:
                self.L.append('    ' + line)
    def lab(self, base='L'):
        self.nlab += 1
        return f'{base}_{self.nlab}'
    def c(self, s):
        self.L.append('    ; ' + s)
    def text(self):
        return '\n'.join(self.L) + '\n'

def v(i, n=1):
    return f'v{i}' if n == 1 else f'v[{i}:{i+n-1}]'
def s(i, n=1):
    return f's{i}' if n == 1 else f's[{i}:{i+n-1}]'
def a(i, n=1):
    return f'a{i}' if n == 1 else f'a[{i}:{i+n-1}]'

def kernel_begin(A_, name):
    A_.L.append('.text')
    A_.L.append(f'.globl {name}')
    A_.L.append('.p2align 8')
    A_.L.append(f'.type {name},@function')
    A_.L.append(f'{name}:')

def kernel_desc(A_, name, vgpr, sgpr=102, accum=None):
    if accum is None: accum = min(256, (vgpr + 3) // 4 * 4)
    A_.L.append('.section .rodata,"a"')
    A_.L.append('.p2align 6')
    A_.L.append(f'.amdhsa_kernel {name}')
    A_.L.append(f'  .amdhsa_next_free_vgpr {vgpr}')
    A_.L.append(f'  .amdhsa_next_free_sgpr {sgpr}')
    A_.L.append(f'  .amdhsa_accum_offset {accum}')
    A_.L.append('  .amdhsa_group_segment_fixed_size 0')
    A_.L.append('  .amdhsa_kernarg_size 112')
    A_.L.append('  .amdhsa_user_sgpr_count 2')
    A_.L.append('  .amdhsa_user_sgpr_kernarg_segment_ptr 1')
    A_.L.append('  .amdhsa_system_sgpr_workgroup_id_x 1')
    A_.L.append('  .amdhsa_float_denorm_mode_32 3')
    A_.L.append('.end_amdhsa_kernel')

def srd(A_, d, base, nbytes):
    A_(f's_mov_b32 s{d}, s{base}')
    A_(f's_and_b32 s{d+1}, s{base+1}, 0xffff')
    A_(f's_mov_b32 s{d+2}, {nbytes:#x}')
    A_(f's_mov_b32 s{d+3}, 0x00020000')
```

```python
from asmgen import *
from layout import *
import struct, sys
def f2u(x): return struct.unpack('<I', struct.pack('<f', x))[0]
C1 = 192 ** -0.5 * 1.4426950408889634

L_MEM = 0
L_O = 10240
L_SC = 22528
L_VL = 34816
L_ID = 35840
L_VX = 36864

V_RELM0, V_RELM2, V_LDSB, V_RELO, V_PUB, V_H1A, V_H1B, V_XPUB, V_XPOLL, V_MEMPUB = 2,3,4,5,6,7,8,9,10,11
V_KX0, V_VX, V_KMST, V_VMST, V_SCW, V_SCR, V_VLW, V_VXW = 12,13,14,15,16,17,18,19
V_SENT = 24
V_PA, V_PB = 28, 40
V_KXN = 52
V_VXS = 56
V_Q, V_K, V_V, V_D0 = 60, 64, 68, 72
V_QB, V_KB, V_KXF = 84, 86, 88
V_WO2 = 92
V_B1 = 108
V_FR = 112

def wo_reg(ks, half=None):
    if ks < 4: base, f = 240 + 4*ks, a
    elif ks < 20: base, f = 192 + 4*(ks-4), v
    else: base, f = V_WO2 + 4*(ks-20), v
    return f(base, 4) if half is None else f(base + 2*half, 2)

class Chain:
    def __init__(self, e, prof=False, nsteps=64, opt=None):
        self.e = e; self.prof = prof; self.nsteps = nsteps; self.opt = opt or {}
        self.stamps = []
    def o(self, k, d=0): return self.opt.get(k, d)
    def stamp(self, name):
        if not self.prof: return
        n = len(self.stamps); self.stamps.append(name)
        self.e(f'''s_memtime s[58:59]
        s_waitcnt lgkmcnt(0)
        s_sub_u32 s57, s58, s56
        s_add_u32 s{64+n}, s{64+n}, s57
        s_mov_b32 s56, s58''')
    def fail(self, top):
        self.e(f'''s_add_u32 s50, s50, 1
        s_cmp_lt_u32 s50, 0x200000
        s_cbranch_scc1 {top}
        s_branch L_abort''')
    def delay(self, n):
        while n > 0:
            k = min(n, 16); self.e(f's_nop {k-1}'); n -= k

    def role(self, nper=24, nxcd=4):
        e = self.e
        e('''
        s_cmp_ge_u32 s2, 256
        s_cbranch_scc1 L_end
        s_load_dwordx2 s[4:5], s[0:1], 96
        s_load_dwordx2 s[6:7], s[0:1], 104
        s_getreg_b32 s8, hwreg(HW_REG_XCC_ID, 0, 4)
        v_lshrrev_b32 v20, 6, v0
        v_and_b32 v1, 63, v0
        s_nop 0
        v_readfirstlane_b32 s9, v20
        s_waitcnt lgkmcnt(0)
        ''')
        srd(e, 12, 6, 0x10000000)
        srd(e, 20, 4, 256)
        e(f'''
        s_cmp_lg_u32 s9, 0
        s_cbranch_scc1 L_role1
        s_lshl_b32 s24, s8, 2
        v_mov_b32 v20, s24
        v_mov_b32 v21, 1
        s_mov_b64 exec, 1
        buffer_atomic_add v21, v20, s[20:23], 0 offen sc0
        s_waitcnt vmcnt(0)
        v_mov_b32 v20, {L_ID}
        ds_write_b32 v20, v21
        s_waitcnt lgkmcnt(0)
        s_mov_b64 exec, -1
        L_role1:
        s_barrier
        v_mov_b32 v20, {L_ID}
        ds_read_b32 v21, v20
        s_waitcnt lgkmcnt(0)
        v_readfirstlane_b32 s10, v21
        s_nop 3
        s_cmp_ge_u32 s10, {nper}
        s_cbranch_scc1 L_end
        s_cmp_ge_u32 s8, {nxcd}
        s_cbranch_scc1 L_end
        s_barrier
        ''')

    def load_strip(self, ptr_off, nbytes, rowstride, nrows):
        e = self.e
        e(f'''
        s_load_dwordx2 s[16:17], s[0:1], {ptr_off}
        s_waitcnt lgkmcnt(0)
        s_and_b32 s17, s17, 0xffff
        s_mov_b32 s18, {nbytes:#x}
        s_mov_b32 s19, 0x00020000
        v_lshrrev_b32 v20, 3, v1
        s_lshl_b32 s40, s9, 3
        v_add_u32 v20, s40, v20
        s_mov_b32 s41, {rowstride}
        v_mul_lo_u32 v20, v20, s41
        v_and_b32 v21, 7, v1
        v_lshlrev_b32 v21, 4, v21
        v_add_u32 v20, v20, v21
        s_mov_b32 s40, s42
        s_lshl_b32 s41, s9, 10
        ''')
        for t in range(nrows // 32):
            e(f'''
            s_mov_b32 m0, s41
            s_add_u32 s41, s41, 4096
            buffer_load_dwordx4 v20, s[16:19], s40 offen lds
            s_add_u32 s40, s40, {32*rowstride}
            ''')
        e('s_waitcnt vmcnt(0)')
        e('s_barrier')
        e('''
        v_and_b32 v21, 15, v1
        v_lshrrev_b32 v22, 2, v21
        v_lshlrev_b32 v23, 7, v22
        v_and_b32 v21, 3, v1
        v_lshlrev_b32 v21, 3, v21
        v_add_u32 v23, v23, v21
        s_lshl_b32 s40, s9, 5
        v_add_u32 v23, s40, v23
        v_lshrrev_b32 v21, 4, v1
        ''')

    def prologue(self):
        e = self.e; hsel = self.o('hsel')
        e('''
        s_mul_i32 s11, s10, 43
        s_lshr_b32 s11, s11, 7          ; hl = j/3
        s_mul_i32 s24, s11, 3
        s_sub_u32 s24, s10, s24         ; i = j%3
        s_lshl_b32 s25, s8, 3
        s_add_u32 s25, s25, s11         ; h
        s_lshl_b32 s26, s24, 2
        s_add_u32 s26, s26, s9          ; T
        s_mul_i32 s27, s10, 26
        s_lshr_b32 s27, s27, 8          ; khalf = j/10
        s_mul_i32 s28, s27, 10
        s_sub_u32 s28, s10, s28         ; cg = j%10
        s_mul_i32 s42, s25, 384
        s_lshl_b32 s43, s24, 7
        s_add_u32 s42, s42, s43
        ''')
        for poff, abase in [(16, 0), (24, 80), (32, 160)]:
            self.load_strip(poff, 640*12288, 12288, 640)
            e('''v_lshlrev_b32 v21, 10, v21
            v_add_u32 v23, v23, v21
            v_add_u32 v22, 0x10000, v23''')
            for ks in range(20):
                for half in range(2):
                    off = (32*ks + 4*half) * 128
                    if off < 65536: e(f'ds_read_b64_tr_b16 {a(abase+4*ks+2*half,2)}, v23 offset:{off}')
                    else: e(f'ds_read_b64_tr_b16 {a(abase+4*ks+2*half,2)}, v22 offset:{off-65536}')
                if ks % 4 == 3: e('s_waitcnt lgkmcnt(0)')
            e('s_barrier')
        e(f'''
        s_cmp_ge_u32 s10, 20
        s_cbranch_scc1 L_nowo
        s_lshl_b32 s42, s8, 3
        s_lshl_b32 s43, s27, 2
        s_add_u32 s42, s42, s43
        s_mul_i32 s42, s42, {192*1280}
        s_lshl_b32 s43, s28, 7
        s_add_u32 s42, s42, s43
        ''')
        self.load_strip(40, 6144*1280, 1280, 768)
        e('''v_lshlrev_b32 v21, 9, v21
        v_add_u32 v23, v23, v21
        v_add_u32 v22, 0x10000, v23''')
        for ks in range(24):
            hh, tp = ks // 6, ks % 6
            for half in range(2):
                off = (hh*192 + 32*tp + 16*half) * 128
                if off < 65536: e(f'ds_read_b64_tr_b16 {wo_reg(ks,half)}, v23 offset:{off}')
                else: e(f'ds_read_b64_tr_b16 {wo_reg(ks,half)}, v22 offset:{off-65536}')
            if ks % 4 == 3: e('s_waitcnt lgkmcnt(0)')
        e('s_barrier')
        e('L_nowo:')
        e(f'''
        v_and_b32 v20, 15, v1            ; l&15
        v_lshrrev_b32 v21, 4, v1         ; g
        v_and_b32 v22, 7, v1             ; m&7
        v_bfe_u32 v23, v1, 3, 1          ; hi
        s_mul_i32 s40, s9, 160
        v_add_u32 v{V_RELM0}, s40, v1
        v_lshlrev_b32 v{V_RELM0}, 4, v{V_RELM0}
        v_add_u32 v{V_RELM2}, 128, v1
        v_min_u32 v{V_RELM2}, 159, v{V_RELM2}
        v_add_u32 v{V_RELM2}, s40, v{V_RELM2}
        v_lshlrev_b32 v{V_RELM2}, 4, v{V_RELM2}
        v_lshlrev_b32 v{V_LDSB}, 7, v21
        v_lshl_add_u32 v{V_LDSB}, v22, 4, v{V_LDSB}
        s_mul_i32 s40, s9, 3072
        v_lshlrev_b32 v{V_RELO}, 4, v1
        v_add_u32 v{V_RELO}, s40, v{V_RELO}
        v_add_u32 v{V_SCW}, {L_SC}, v{V_RELO}
        s_lshl_b32 s40, s9, 10
        v_lshlrev_b32 v{V_SCR}, 4, v1
        v_add_u32 v{V_SCR}, s40, v{V_SCR}
        v_add_u32 v{V_VXW}, {L_VX}, v{V_SCR}
        v_add_u32 v{V_SCR}, {L_SC}, v{V_SCR}
        s_lshl_b32 s40, s9, 8
        v_lshlrev_b32 v{V_VLW}, 2, v1
        v_add_u32 v{V_VLW}, s40, v{V_VLW}
        v_add_u32 v{V_VLW}, {L_VL}, v{V_VLW}
        s_mul_i32 s40, s25, 3
        s_add_u32 s40, s40, s24
        s_mul_i32 s40, s40, 1536
        s_lshl_b32 s41, s9, 9
        s_add_u32 s40, s40, s41
        s_add_u32 s40, s40, {H1_OFF}
        s_mul_i32 s41, s8, 24576
        s_lshr_b32 s42, s11, 2
        s_mul_i32 s42, s42, 12288
        s_add_u32 s41, s41, s42
        s_and_b32 s42, s11, 3
        s_mul_i32 s42, s42, 6
        s_lshl_b32 s43, s24, 1
        s_add_u32 s42, s42, s43
        s_lshl_b32 s42, s42, 9
        s_add_u32 s41, s41, s42
        s_add_u32 s41, s41, {O_OFF}
        s_cmp_eq_u32 s9, 3
        s_cselect_b32 s40, s41, s40
        v_add_u32 v{V_PUB}, s40, v{V_LDSB}
        s_mul_i32 s40, s25, 4608
        s_add_u32 s40, s40, {H1_OFF}
        v_lshlrev_b32 v{V_H1A}, 9, v23
        v_add_u32 v{V_H1A}, v{V_H1A}, v{V_LDSB}
        v_add_u32 v{V_H1A}, s40, v{V_H1A}
        v_add_u32 v{V_H1A}, 512, v{V_H1A}
        v_and_b32 v24, 1, v21
        v_lshlrev_b32 v{V_H1B}, 7, v24
        v_lshl_add_u32 v{V_H1B}, v22, 4, v{V_H1B}
        v_lshrrev_b32 v24, 1, v21
        v_lshl_add_u32 v24, v24, 1, v23
        v_lshl_add_u32 v{V_H1B}, v24, 2, v{V_H1B}
        v_add_u32 v{V_H1B}, s40, v{V_H1B}
        s_lshl_b32 s40, s28, 1
        s_lshr_b32 s41, s9, 1
        s_add_u32 s40, s40, s41
        s_lshl_b32 s40, s40, 14
        s_lshl_b32 s41, s8, 1
        s_add_u32 s41, s41, s27
        s_lshl_b32 s41, s41, 10
        s_add_u32 s40, s40, s41
        s_and_b32 s41, s9, 1
        s_lshl_b32 s41, s41, 9
        s_add_u32 s40, s40, s41
        s_add_u32 s40, s40, {hsel*8192}
        v_add_u32 v{V_XPUB}, s40, v{V_LDSB}
        s_lshl_b32 s40, s10, 14
        s_add_u32 s40, s40, {hsel*8192}
        v_lshlrev_b32 v{V_XPOLL}, 4, v1
        v_add_u32 v{V_XPOLL}, s40, v{V_XPOLL}
        v_lshrrev_b32 v24, 5, v1
        v_lshlrev_b32 v{V_MEMPUB}, 8, v24
        v_bfe_u32 v24, v1, 4, 1
        v_lshl_add_u32 v{V_MEMPUB}, v24, 7, v{V_MEMPUB}
        v_lshl_add_u32 v{V_MEMPUB}, v22, 4, v{V_MEMPUB}
        v_lshl_add_u32 v{V_MEMPUB}, v23, 3, v{V_MEMPUB}
        s_mul_i32 s40, s8, 10240
        s_lshl_b32 s41, s10, 9
        s_add_u32 s40, s40, s41
        s_add_u32 s40, s40, {MEM_OFF}
        v_add_u32 v{V_MEMPUB}, s40, v{V_MEMPUB}
        s_mul_i32 s40, s25, 12288
        s_lshl_b32 s41, s26, 10
        s_add_u32 s41, s41, s40
        s_add_u32 s41, s41, {KX}
        v_lshlrev_b32 v{V_KX0}, 5, v20
        v_and_b32 v24, 1, v21
        v_lshl_add_u32 v{V_KX0}, v24, 4, v{V_KX0}
        v_lshrrev_b32 v24, 1, v21
        v_lshl_add_u32 v{V_KX0}, v24, 3, v{V_KX0}
        v_add_u32 v{V_KX0}, s41, v{V_KX0}
        s_lshl_b32 s41, s26, 10
        s_add_u32 s41, s41, s40
        s_add_u32 s41, s41, {VX}
        v_lshlrev_b32 v{V_VX}, 4, v1
        v_add_u32 v{V_VX}, s41, v{V_VX}
        s_mul_i32 s40, s25, 3072
        s_lshl_b32 s41, s26, 8
        s_add_u32 s40, s40, s41
        v_lshlrev_b32 v{V_KMST}, 5, v22
        v_and_b32 v24, 1, v21
        v_lshl_add_u32 v{V_KMST}, v24, 4, v{V_KMST}
        v_lshrrev_b32 v24, 1, v21
        v_lshl_add_u32 v{V_KMST}, v24, 3, v{V_KMST}
        s_add_u32 s41, s40, {KM}
        v_add_u32 v{V_KMST}, s41, v{V_KMST}
        v_lshlrev_b32 v{V_VMST}, 7, v21
        v_lshl_add_u32 v{V_VMST}, v20, 3, v{V_VMST}
        s_add_u32 s41, s40, {VM}
        v_add_u32 v{V_VMST}, s41, v{V_VMST}
        v_mov_b32 v{V_SENT}, -1
        v_mov_b32 v{V_SENT+1}, -1
        v_mov_b32 v{V_SENT+2}, -1
        v_mov_b32 v{V_SENT+3}, -1
        s_mov_b32 s44, 0x00ff00ff
        s_mov_b32 s45, 0x00ff00ff
        s_mov_b32 s46, {f2u(C1):#x}
        s_mul_i32 s47, s8, 10240
        s_add_u32 s47, s47, {MEM_OFF}
        s_mul_i32 s48, s8, 24576
        s_mul_i32 s40, s27, 12288
        s_add_u32 s48, s48, s40
        s_add_u32 s48, s48, {O_OFF}
        s_mov_b32 s30, 0
        s_mov_b32 s31, 0
        s_mov_b32 s33, {SLOT}
        s_mov_b32 s32, {2*SLOT}
        s_mov_b32 s34, 0
        s_mov_b32 s35, 0
        s_mov_b32 s50, 0
        s_mov_b32 s51, 0
        ''')
        e(f'''
        s_cmp_ge_u32 s10, 20
        s_cbranch_scc1 L_nomem0
        s_cmp_lg_u32 s9, 0
        s_cbranch_scc1 L_nomem0
        s_load_dwordx2 s[16:17], s[0:1], 8
        s_waitcnt lgkmcnt(0)
        s_and_b32 s17, s17, 0xffff
        s_mov_b32 s18, 10240
        s_mov_b32 s19, 0x00020000
        v_and_b32 v20, 7, v1
        v_mul_u32_u24 v20, 1280, v20
        v_lshrrev_b32 v21, 3, v1
        v_and_b32 v21, 3, v21
        v_lshl_add_u32 v20, v21, 4, v20
        s_lshl_b32 s40, s10, 6
        v_add_u32 v20, s40, v20
        buffer_load_dwordx4 v[28:31], v20, s[16:19], 0 offen
        v_and_b32 v21, 31, v1
        v_lshlrev_b32 v21, 4, v21
        s_lshl_b32 s40, s10, 9
        s_add_u32 s40, s40, s47
        v_add_u32 v21, s40, v21
        s_waitcnt vmcnt(0)
        buffer_store_dwordx4 v[28:31], v21, s[12:15], 0 offen
        L_nomem0:
        ''')
        e(f'''
        buffer_load_dwordx2 {v(V_KXN,2)}, v{V_KX0}, s[12:15], s34 offen
        buffer_load_dwordx2 {v(V_KXN+2,2)}, v{V_KX0}, s[12:15], s34 offen offset:512
        buffer_load_dwordx4 {v(V_VXS,4)}, v{V_VX}, s[12:15], s34 offen
        s_waitcnt vmcnt(0)
        ds_write_b128 v{V_VXW}, {v(V_VXS,4)}
        s_waitcnt lgkmcnt(0)
        s_barrier
        ''')

    def poll3(self, name, loads, soff, ldsw):
        e = self.e
        def issue(R):
            for n, (va, off) in enumerate(loads):
                e(f'buffer_load_dwordx4 {v(R+4*n,4)}, v{va}, s[12:15], {soff} offen offset:{off} sc1')
        def check(R):
            e(f'''v_max3_u32 v20, v{R}, v{R+1}, v{R+2}
            v_max3_u32 v21, v{R+3}, v{R+4}, v{R+5}
            v_max3_u32 v20, v20, v{R+6}, v{R+7}
            v_max3_u32 v21, v21, v{R+8}, v{R+9}
            v_max3_u32 v20, v20, v{R+10}, v{R+11}
            v_max_u32 v20, v20, v21
            v_cmp_eq_u32 vcc, -1, v20''')
        def wr(R):
            for n, (va, off) in enumerate(ldsw):
                e(f'ds_write_b128 v{va}, {v(R+4*n,4)} offset:{off}')
        if self.o('dbl', 1):
            self.delay(self.o('d_'+name, 0))
            issue(V_PA)
            self.delay(self.o('g_'+name, 16))
            issue(V_PB)
            e(f'L_{name}:')
            e('s_waitcnt vmcnt(3)')
            check(V_PA)
            e(f's_cbranch_vccz L_{name}A')
            issue(V_PA)
            e('s_waitcnt vmcnt(3)')
            check(V_PB)
            e(f's_cbranch_vccz L_{name}B')
            issue(V_PB)
            self.fail(f'L_{name}')
            e(f'L_{name}B:')
            wr(V_PB)
            e(f's_branch L_{name}J')
            e(f'L_{name}A:')
            wr(V_PA)
            e(f'L_{name}J:')
        else:
            self.delay(self.o('d_'+name, 0))
            e(f'L_{name}:')
            issue(V_PA)
            e('s_waitcnt vmcnt(0)')
            if self.o('fine'): self.stamp(name+'_ld')
            check(V_PA)
            e(f's_cbranch_vccz L_{name}A')
            self.fail(f'L_{name}')
            e(f'L_{name}A:')
            if self.o('fine'): self.stamp(name+'_ck')
            wr(V_PA)
        e('s_waitcnt lgkmcnt(0)')
        if self.o('fine'): self.stamp(name+'_dw')
        e('s_barrier')

    def main(self):
        e = self.e; NS = self.nsteps
        e('L_step:')
        self.stamp('top')
        e('s_add_u32 s40, s31, s47')
        self.poll3('p0', [(V_RELM0,0),(V_RELM0,1024),(V_RELM2,0)], 's40', [(V_RELM0,0),(V_RELM0,1024),(V_RELM2,0)])
        self.stamp('P0')
        PRE = 3
        for ks in range(PRE):
            e(f'ds_read_b128 {v(V_FR+4*ks,4)}, v{V_LDSB} offset:{512*ks}')
        def resets():
            e(f'''s_mov_b64 exec, s[44:45]
            buffer_store_dwordx4 {v(V_SENT,4)}, v{V_PUB}, s[12:15], s32 offen
            s_cmp_lg_u32 s9, 3
            s_cbranch_scc1 L_rs1
            buffer_store_dwordx4 {v(V_SENT,4)}, v{V_PUB}, s[12:15], s32 offen offset:512
            L_rs1:
            s_cmp_ge_u32 s10, 20
            s_cbranch_scc1 L_rs2
            buffer_store_dwordx4 {v(V_SENT,4)}, v{V_XPUB}, s[12:15], s32 offen sc1
            s_cmp_lg_u32 s9, 0
            s_cbranch_scc1 L_rs2
            s_mov_b64 exec, -1
            buffer_store_dwordx2 {v(V_SENT,2)}, v{V_MEMPUB}, s[12:15], s32 offen
            L_rs2:
            s_mov_b64 exec, -1''')
        def prefetch():
            e(f'''s_add_u32 s36, s34, {SEGQ}
            s_cmp_eq_u32 s30, {NS-1}
            s_cselect_b32 s36, s34, s36
            buffer_load_dwordx2 {v(V_KXN,2)}, v{V_KX0}, s[12:15], s36 offen
            buffer_load_dwordx2 {v(V_KXN+2,2)}, v{V_KX0}, s[12:15], s36 offen offset:512
            s_cmp_eq_u32 s9, 3
            s_cbranch_scc1 L_pf1
            buffer_load_dwordx4 {v(V_VXS,4)}, v{V_VX}, s[12:15], s36 offen
            s_cmp_lg_u32 s9, 0
            s_cbranch_scc1 L_pf1
            buffer_load_dwordx4 {v(V_B1,4)}, v{V_VX}, s[12:15], s36 offen offset:3072
            L_pf1:''')
        for ks in range(20):
            issued = min(20, PRE + ks)
            e(f's_waitcnt lgkmcnt({issued - ks - 1})')
            c0 = '0' if ks == 0 else v(V_Q,4)
            c1 = '0' if ks == 0 else v(V_K,4)
            e(f'v_mfma_f32_16x16x32_bf16 {v(V_Q,4)}, {a(4*ks,4)}, {v(V_FR+4*ks,4)}, {c0}')
            if PRE + ks < 20:
                e(f'ds_read_b128 {v(V_FR+4*(PRE+ks),4)}, v{V_LDSB} offset:{512*(PRE+ks)}')
            e(f'v_mfma_f32_16x16x32_bf16 {v(V_K,4)}, {a(80+4*ks,4)}, {v(V_FR+4*ks,4)}, {c1}')
            if ks == 1:
                for r_ in range(4): e(f'v_mov_b32 v{V_KXF+r_}, v{V_KXN+r_}')
            if ks == self.o('kpf',3) and not self.o('nopf'): prefetch()
            if ks == self.o('kres',6) and not self.o('nores'): resets()
        self.stamp('QKloop')
        e(f'''
        s_nop 7
        v_cvt_pk_bf16_f32 v{V_QB}, v{V_Q}, v{V_Q+1}
        v_cvt_pk_bf16_f32 v{V_QB+1}, v{V_Q+2}, v{V_Q+3}
        v_cvt_pk_bf16_f32 v{V_KB}, v{V_K}, v{V_K+1}
        v_cvt_pk_bf16_f32 v{V_KB+1}, v{V_K+2}, v{V_K+3}
        s_nop 0
        v_mfma_f32_16x16x16_bf16 {v(V_D0+4,4)}, {v(V_KXF,2)}, {v(V_QB,2)}, 0
        v_mfma_f32_16x16x16_bf16 {v(V_D0+8,4)}, {v(V_KXF+2,2)}, {v(V_QB,2)}, 0
        v_mfma_f32_16x16x16_bf16 {v(V_D0,4)}, {v(V_KB,2)}, {v(V_QB,2)}, 0
        s_nop 5
        ds_write_b128 v{V_SCW}, {v(V_D0+4,4)} offset:1024
        ds_write_b128 v{V_SCW}, {v(V_D0+8,4)} offset:2048
        s_nop 3
        ds_write_b128 v{V_SCW}, {v(V_D0,4)}
        s_waitcnt lgkmcnt(0)
        s_barrier
        ''')
        self.stamp('QK')
        R = [V_Q, V_D0, V_D0+4, V_D0+8]
        e(f'''
        s_cmp_eq_u32 s9, 3
        s_cbranch_scc1 L_p2b
        ds_read_b128 {v(R[0],4)}, v{V_SCR}
        ds_read_b128 {v(R[1],4)}, v{V_SCR} offset:3072
        ds_read_b128 {v(R[2],4)}, v{V_SCR} offset:6144
        ds_read_b128 {v(R[3],4)}, v{V_SCR} offset:9216
        s_waitcnt lgkmcnt(2)
        v_pk_add_f32 {v(R[0],2)}, {v(R[0],2)}, {v(R[1],2)}
        v_pk_add_f32 {v(R[0]+2,2)}, {v(R[0]+2,2)}, {v(R[1]+2,2)}
        s_waitcnt lgkmcnt(0)
        v_pk_add_f32 {v(R[2],2)}, {v(R[2],2)}, {v(R[3],2)}
        v_pk_add_f32 {v(R[2]+2,2)}, {v(R[2]+2,2)}, {v(R[3]+2,2)}
        v_pk_add_f32 {v(R[0],2)}, {v(R[0],2)}, {v(R[2],2)}
        v_pk_add_f32 {v(R[0]+2,2)}, {v(R[0]+2,2)}, {v(R[2]+2,2)}
        s_mov_b64 exec, s[44:45]
        buffer_store_dwordx4 {v(R[0],4)}, v{V_PUB}, s[12:15], s31 offen
        s_mov_b64 exec, -1
        L_p2b:
        ''')
        self.stamp('H1pub')
        for ks in range(20):
            c0 = '0' if ks == 0 else v(V_V,4)
            e(f'v_mfma_f32_16x16x32_bf16 {v(V_V,4)}, {v(V_FR+4*ks,4)}, {a(160+4*ks,4)}, {c0}')
            if ks == 0:
                e(f'''s_mov_b64 exec, s[44:45]
                buffer_store_dwordx2 {v(V_KB,2)}, v{V_KMST}, s[12:15], s35 offen
                s_mov_b64 exec, -1''')
        VXF = V_FR; S = V_FR + 16; S2 = V_FR + 32
        W = V_FR + 48
        e(f'''
        s_cmp_lg_u32 s9, 3
        s_cbranch_scc1 L_novx
        v_lshlrev_b32 v21, 4, v1
        v_add_u32 v21, s51, v21
        ds_read_b128 {v(VXF,4)}, v21 offset:{L_VX}
        ds_read_b128 {v(VXF+4,4)}, v21 offset:{L_VX+1024}
        ds_read_b128 {v(VXF+8,4)}, v21 offset:{L_VX+2048}
        ds_read_b128 {v(VXF+12,4)}, v21 offset:{L_VX+3072}
        L_novx:
        s_nop 5
        v_cvt_pk_bf16_f32 v20, v{V_V}, v{V_V+1}
        v_cvt_pk_bf16_f32 v21, v{V_V+2}, v{V_V+3}
        s_mov_b32 exec_hi, 0
        buffer_store_dwordx2 v[20:21], v{V_VMST}, s[12:15], s35 offen
        v_mov_b32 v22, v20
        s_mov_b32 exec_lo, 0
        s_mov_b32 exec_hi, -1
        v_mov_b32 v22, v21
        s_mov_b32 exec_lo, -1
        ds_write_b32 v{V_VLW}, v22
        s_cmp_eq_u32 s30, {NS-1}
        s_cbranch_scc1 L_done
        s_cmp_eq_u32 s9, 3
        s_cbranch_scc1 L_p3
        s_waitcnt vmcnt(0)
        s_xor_b32 s40, s51, 4096
        v_add_u32 v21, s40, v{V_VXW}
        ds_write_b128 v21, {v(V_VXS,4)}
        s_cmp_lg_u32 s9, 0
        s_cbranch_scc1 L_vxw
        ds_write_b128 v21, {v(V_B1,4)} offset:3072
        L_vxw:
        s_waitcnt lgkmcnt(0)
        s_barrier
        ''')
        self.stamp('Vw012')
        e('s_branch L_p3done')
        e('L_p3:')
        self.stamp('Vw3')
        def h1issue(R):
            for p in range(3):
                e(f'buffer_load_dwordx4 {v(R+4*p,4)}, v{V_H1A}, s[12:15], s31 offen offset:{1536*p} sc1')
                e(f'buffer_load_dword v{R+12+p}, v{V_H1B}, s[12:15], s31 offen offset:{1536*p} sc1')
        def h1sum(R, D):
            e(f'''v_pk_add_f32 {v(D,2)}, {v(R,2)}, {v(R+4,2)}
            v_pk_add_f32 {v(D+2,2)}, {v(R+2,2)}, {v(R+6,2)}
            v_add_f32 v{D+4}, v{R+12}, v{R+13}
            v_pk_add_f32 {v(D,2)}, {v(D,2)}, {v(R+8,2)}
            v_pk_add_f32 {v(D+2,2)}, {v(D+2,2)}, {v(R+10,2)}
            v_add_f32 v{D+4}, v{D+4}, v{R+14}
            v_add_f32 v20, v{D}, v{D+1}
            v_add_f32 v21, v{D+2}, v{D+3}
            v_add_f32 v20, v20, v{D+4}
            v_add_f32 v20, v20, v21
            v_cmp_u_f32 vcc, v20, v20''')
        D = V_Q
        if self.o('dbl', 1):
            h1issue(S)
            self.delay(self.o('g_h1', 16))
            h1issue(S2)
            e('L_p3poll:')
            e('s_waitcnt vmcnt(6)')
            h1sum(S, D)
            e('s_cbranch_vccz L_p3d')
            h1issue(S)
            e('s_waitcnt vmcnt(6)')
            h1sum(S2, D)
            e('s_cbranch_vccz L_p3d')
            h1issue(S2)
            self.fail('L_p3poll')
        else:
            e('L_p3poll:')
            h1issue(S)
            e('s_waitcnt vmcnt(0)')
            h1sum(S, D)
            e('s_cbranch_vccz L_p3d')
            self.fail('L_p3poll')
        e('L_p3d:')
        self.stamp('H1poll')
        B2 = W; VD = W + 2
        e(f'''
        v_max3_f32 v20, v{D}, v{D+1}, v{D+2}
        v_max3_f32 v20, v20, v{D+3}, v{D+4}
        s_nop 1
        v_max_f32_dpp v20, v20, v20 row_ror:8 row_mask:0xf bank_mask:0xf
        v_mov_b32 v21, v20
        s_nop 1
        v_permlane16_swap_b32 v20, v21
        v_max_f32 v20, v20, v21
        v_mov_b32 v21, v20
        s_nop 1
        v_permlane32_swap_b32 v20, v21
        v_max_f32 v20, v20, v21
        v_mul_f32 v20, s46, v20
        v_fma_f32 v{D}, v{D}, s46, -v20
        v_fma_f32 v{D+1}, v{D+1}, s46, -v20
        v_fma_f32 v{D+2}, v{D+2}, s46, -v20
        v_fma_f32 v{D+3}, v{D+3}, s46, -v20
        v_fma_f32 v{D+4}, v{D+4}, s46, -v20
        v_exp_f32 v{D}, v{D}
        v_exp_f32 v{D+1}, v{D+1}
        v_exp_f32 v{D+2}, v{D+2}
        v_exp_f32 v{D+3}, v{D+3}
        v_exp_f32 v{D+4}, v{D+4}
        s_waitcnt lgkmcnt(0)
        s_barrier
        v_lshlrev_b32 v21, 2, v1
        ds_read_b32 v{VD}, v21 offset:{L_VL}
        ds_read_b32 v{VD+2}, v21 offset:{L_VL+256}
        ds_read_b32 v{VD+4}, v21 offset:{L_VL+512}
        ds_read_b32 v{VD+6}, v21 offset:{L_VL+768}
        v_cvt_pk_bf16_f32 v{V_B1}, v{D}, v{D+1}
        v_cvt_pk_bf16_f32 v{V_B1+1}, v{D+2}, v{D+3}
        v_mov_b32_dpp v23, v{D+4} row_ror:8 row_mask:0xf bank_mask:0xf
        v_add_f32 v22, v{D}, v{D+1}
        v_mov_b32_dpp v{V_B1+2}, v{V_B1} row_ror:8 row_mask:0xf bank_mask:0xf
        v_mov_b32_dpp v{V_B1+3}, v{V_B1+1} row_ror:8 row_mask:0xf bank_mask:0xf
        v_cvt_pk_bf16_f32 v{B2}, v{D+4}, v23
        v_mov_b32 v{B2+1}, 0
        v_add_f32 v23, v{D+2}, v{D+3}
        v_add_f32 v22, v22, v{D+4}
        ''')
        PV = V_D0 - 4
        for t in range(4):
            e(f'v_mfma_f32_16x16x32_bf16 {v(PV+4*t,4)}, {v(VXF+4*t,4)}, {v(V_B1,4)}, 0')
            if t == 0: e('v_add_f32 v22, v22, v23')
            if t == 0: e(f'v_mov_b32 v{VD+1}, 0')
            if t == 1: e(f'v_mov_b32 v{VD+3}, 0');
            if t == 1: e('v_add_f32_dpp v22, v22, v22 row_ror:8 row_mask:0xf bank_mask:0xf')
            if t == 2: e(f'v_mov_b32 v{VD+5}, 0');
            if t == 2: e('v_mov_b32 v23, v22')
            if t == 3: e(f'v_mov_b32 v{VD+7}, 0')
        e(f'''
        s_waitcnt lgkmcnt(0)
        v_permlane16_swap_b32 v22, v23
        v_add_f32 v22, v22, v23
        v_mov_b32 v23, v22
        ''')
        for t in range(4):
            e(f'v_mfma_f32_16x16x16_bf16 {v(PV+4*t,4)}, {v(VD+2*t,2)}, {v(B2,2)}, {v(PV+4*t,4)}')
            if t == 1: e('v_permlane32_swap_b32 v22, v23')
        e(f'''
        v_add_f32 v22, v22, v23
        v_rcp_f32 v22, v22
        s_nop 3
        ''')
        O = V_Q
        for t in range(4):
            e(f'v_pk_mul_f32 {v(PV+4*t,2)}, {v(PV+4*t,2)}, {v(22,2)} op_sel_hi:[1,0]')
            e(f'v_pk_mul_f32 {v(PV+4*t+2,2)}, {v(PV+4*t+2,2)}, {v(22,2)} op_sel_hi:[1,0]')
            e(f'v_cvt_pk_bf16_f32 v{O+2*t}, v{PV+4*t}, v{PV+4*t+1}')
            e(f'v_cvt_pk_bf16_f32 v{O+2*t+1}, v{PV+4*t+2}, v{PV+4*t+3}')
            if t == 1:
                e(f'''s_mov_b64 exec, s[44:45]
                buffer_store_dwordx4 {v(O,4)}, v{V_PUB}, s[12:15], s31 offen
                s_mov_b64 exec, -1''')
        e(f'''
        s_mov_b64 exec, s[44:45]
        buffer_store_dwordx4 {v(O+4,4)}, v{V_PUB}, s[12:15], s31 offen offset:512
        s_mov_b64 exec, -1
        ''')
        self.stamp('SMPV')
        e('L_p3done:')
        e(f'''
        s_cmp_ge_u32 s10, 20
        s_cbranch_scc1 L_next
        s_barrier
        s_add_u32 s40, s31, s48
        ''')
        self.stamp('B3b')
        self.poll3('p4', [(V_RELO,0),(V_RELO,1024),(V_RELO,2048)], 's40', [(V_RELO,L_O),(V_RELO,L_O+1024),(V_RELO,L_O+2048)])
        self.stamp('P4')
        def ofr(ks): return V_FR + 4*ks if ks < 20 else V_K + 4*(ks-20)
        PRE = 4
        for ks in range(PRE):
            e(f'ds_read_b128 {v(ofr(ks),4)}, v{V_LDSB} offset:{L_O+512*ks}')
        for ks in range(24):
            issued = min(24, PRE + ks)
            e(f's_waitcnt lgkmcnt({issued - ks - 1})')
            c0 = '0' if ks == 0 else v(V_Q,4)
            e(f'v_mfma_f32_16x16x32_bf16 {v(V_Q,4)}, {wo_reg(ks)}, {v(ofr(ks),4)}, {c0}')
            if PRE + ks < 24:
                e(f'ds_read_b128 {v(ofr(PRE+ks),4)}, v{V_LDSB} offset:{L_O+512*(PRE+ks)}')
        e(f'''
        s_nop 7
        s_mov_b64 exec, s[44:45]
        buffer_store_dwordx4 {v(V_Q,4)}, v{V_XPUB}, s[12:15], s31 offen sc1
        s_mov_b64 exec, -1
        ''')
        self.stamp('Wo')
        e(f'''
        s_cmp_lg_u32 s9, 0
        s_cbranch_scc1 L_p5done
        v_add_u32 v23, 4096, v{V_XPOLL}
        ''')
        XA, XB = V_FR, V_FR + 32
        def xissue(R):
            for p in range(8):
                va = V_XPOLL if p < 4 else 23
                e(f'buffer_load_dwordx4 {v(R+4*p,4)}, v{va}, s[12:15], s31 offen offset:{1024*(p%4)} sc1')
        def xsum(P):
            for (x, y) in [(0,1),(2,3),(4,5),(6,7),(0,2),(4,6),(0,4)]:
                e(f'v_pk_add_f32 {v(P+4*x,2)}, {v(P+4*x,2)}, {v(P+4*y,2)}')
                e(f'v_pk_add_f32 {v(P+4*x+2,2)}, {v(P+4*x+2,2)}, {v(P+4*y+2,2)}')
            e(f'''v_cvt_pk_bf16_f32 v20, v{P}, v{P+1}
            v_cvt_pk_bf16_f32 v21, v{P+2}, v{P+3}
            v_add_f32 v22, v{P}, v{P+1}
            v_add_f32 v{P+4}, v{P+2}, v{P+3}
            v_add_f32 v22, v22, v{P+4}
            v_cmp_u_f32 vcc, v22, v22''')
        self.delay(self.o('d_x', 0))
        if self.o('dblx', 1):
            xissue(XA)
            self.delay(self.o('g_x', 32))
            xissue(XB)
            e('L_p5:')
            e('s_waitcnt vmcnt(8)')
            xsum(XA)
            e('s_cbranch_vccz L_p5d')
            xissue(XA)
            e('s_waitcnt vmcnt(8)')
            xsum(XB)
            e('s_cbranch_vccz L_p5d')
            xissue(XB)
            self.fail('L_p5')
        else:
            e('L_p5:')
            xissue(XA)
            e('s_waitcnt vmcnt(0)')
            xsum(XA)
            e('s_cbranch_vccz L_p5d')
            self.fail('L_p5')
        e(f'''
        L_p5d:
        buffer_store_dwordx2 v[20:21], v{V_MEMPUB}, s[12:15], s33 offen
        L_p5done:
        ''')
        self.stamp('X')
        e('''s_barrier
        L_next:''')
        e(f'''
        s_add_u32 s30, s30, 1
        s_mov_b32 s40, s31
        s_mov_b32 s31, s33
        s_mov_b32 s33, s32
        s_mov_b32 s32, s40
        s_add_u32 s34, s34, {SEGQ}
        s_add_u32 s35, s35, {SEGM}
        s_xor_b32 s51, s51, 4096
        s_branch L_step
        L_abort:
        v_mov_b32 v20, 128
        v_mov_b32 v21, 0xdead
        buffer_store_dword v21, v20, s[20:23], 0 offen
        L_done:
        ''')
        if self.prof:
            e(f'''
            s_mul_i32 s40, s8, 24
            s_add_u32 s40, s40, s10
            s_lshl_b32 s40, s40, 2
            s_add_u32 s40, s40, s9
            s_lshl_b32 s40, s40, 7
            s_add_u32 s40, s40, {PROF}
            v_mov_b32 v20, s40
            s_mov_b64 exec, 1
            ''')
            for n in range(24):
                src = f's{64+n}' if n < 22 else ('s50' if n == 22 else 's30')
                e(f'v_mov_b32 v{28+n}, {src}')
            for q in range(6):
                e(f'buffer_store_dwordx4 v[{28+4*q}:{31+4*q}], v20, s[12:15], 0 offen offset:{16*q}')
        e('s_waitcnt vmcnt(0)')

if __name__ == '__main__':
    prof = 'prof' in sys.argv
    opt = {}
    for x in sys.argv[2:]:
        if '=' in x:
            k, val = x.split('='); opt[k] = int(val)
    A_ = A()
    A_.L.append('; @launch kernel=chain_kernel grid=(256,1,1) block=(256,1,1) lds=102400')
    A_.L.append('.amdgcn_target "amdgcn-amd-amdhsa--gfx950"')
    kernel_begin(A_, 'chain_kernel')
    C = Chain(A_, prof=prof, nsteps=opt.get('nsteps',64), opt=opt)
    C.role()
    if prof:
        for n in range(56, 90): A_(f's_mov_b32 s{n}, 0')
    C.prologue()
    C.main()
    A_('L_end:')
    A_('s_endpgm')
    kernel_desc(A_, 'chain_kernel', 512, accum=256)
    open(sys.argv[1], 'w').write(A_.text())
    open(sys.argv[1] + '.stamps', 'w').write('\n'.join(C.stamps))
```

```python
from asmgen import *
from layout import *
import struct
def f2u(x): return struct.unpack('<I', struct.pack('<f', x))[0]
C1 = 192 ** -0.5 * 1.4426950408889634

def emit_attn_task(e, sc='', ldsc=''):
    Q, K, KM_, V_, VM_ = 32, 80, 128, 208, 20
    SX, SM = 176, 192
    e(f'''
    v_and_b32 v2, 31, v1
    v_lshrrev_b32 v3, 5, v1
    v_lshlrev_b32 v4, 5, v2
    v_lshl_add_u32 v4, v3, 4, v4            ; token*32 + g2*16
    v_and_b32 v5, 7, v1
    v_lshlrev_b32 v5, 5, v5
    v_lshl_add_u32 v5, v3, 4, v5            ; (key&7)*32 + g2*16
    v_bfe_u32 v6, v1, 4, 1
    v_and_b32 v7, 15, v1
    v_lshlrev_b32 v8, 10, v6
    v_lshl_add_u32 v8, v3, 8, v8
    v_lshl_add_u32 v8, v7, 4, v8            ; V: (e32>>4)*1024 + g2*256 + e16*16
    v_lshlrev_b32 v9, 8, v6
    v_lshl_add_u32 v9, v3, 7, v9
    v_lshl_add_u32 v9, v7, 3, v9            ; VM: (e32>>4)*256 + g2*128 + e16*8
    s_mul_i32 s32, s30, {SEGQ}
    s_mul_i32 s33, s31, 12288
    s_add_u32 s32, s32, s33
    s_mul_i32 s34, s30, {SEGM}
    s_mul_i32 s33, s31, 3072
    s_add_u32 s34, s34, s33
    s_add_u32 s35, s32, {QX}
    s_add_u32 s36, s32, {KX}
    s_add_u32 s37, s34, {KM}
    ''')
    for T in range(12):
        if T % 4 == 0 and T > 0:
            e('s_add_u32 s35, s35, 4096'); e('s_add_u32 s36, s36, 4096')
        e(f'buffer_load_dwordx4 {v(Q+4*T,4)}, v4, s[12:15], s35 offen offset:{1024*(T%4)} {ldsc}')
        e(f'buffer_load_dwordx4 {v(K+4*T,4)}, v4, s[12:15], s36 offen offset:{1024*(T%4)} {ldsc}')
        e(f'buffer_load_dwordx4 {v(KM_+4*T,4)}, v5, s[12:15], s37 offen offset:{256*T} {ldsc}')
    e(f's_add_u32 s35, s32, {VX}'); e(f's_add_u32 s37, s34, {VM}')
    for t in range(6):
        if t % 2 == 0 and t > 0: e('s_add_u32 s35, s35, 4096')
        for ap in range(2):
            e(f'buffer_load_dwordx4 {v(V_+8*t+4*ap,4)}, v8, s[12:15], s35 offen offset:{2048*(t%2)+512*ap} {ldsc}')
        e(f'buffer_load_dwordx2 {v(VM_+2*t,2)}, v9, s[12:15], s37 offen offset:{512*t} {ldsc}')
    for T in range(12):
        e(f's_waitcnt vmcnt({54 - 3*(T+1)})')
        c0 = '0' if T == 0 else v(SX,16); c1 = '0' if T == 0 else v(SM,16)
        e(f'v_mfma_f32_32x32x16_bf16 {v(SX,16)}, {v(K+4*T,4)}, {v(Q+4*T,4)}, {c0}')
        e(f'v_mfma_f32_32x32x16_bf16 {v(SM,16)}, {v(KM_+4*T,4)}, {v(Q+4*T,4)}, {c1}')
    e(f'''
    v_lshlrev_b32 v10, 2, v3
    v_sub_u32 v10, v2, v10
    v_mov_b32 v11, 0xff800000
    s_mov_b32 s38, {f2u(C1):#x}
    ''')
    P = Q
    for b in range(4):
        for i in range(4):
            r = 4*b + i; key = 8*b + i
            e(f'v_cmp_le_i32 s[{40+2*i}:{41+2*i}], {key}, v10')
        if b == 0:
            e('s_nop 7'); e('s_nop 3')
        else:
            e('s_nop 0')
        for i in range(4):
            r = 4*b + i
            e(f'v_cndmask_b32 v{P+r}, v11, v{SX+r}, s[{40+2*i}:{41+2*i}]')
    e(f'v_max3_f32 v12, v{SM}, v{SM+1}, v{SM+2}')
    e(f'v_max3_f32 v13, v{SM+3}, v{P}, v{P+1}')
    for i in range(7):
        d = 12 + (i % 2)
        e(f'v_max3_f32 v{d}, v{d}, v{P+2+2*i}, v{P+3+2*i}')
    e('''v_max_f32 v12, v12, v13
    v_mov_b32 v13, v12
    s_nop 1
    v_permlane32_swap_b32 v12, v13
    v_max_f32 v12, v12, v13
    v_mul_f32 v12, s38, v12''')
    vals = [P+i for i in range(16)] + [SM+i for i in range(4)]
    for r in vals: e(f'v_fma_f32 v{r}, v{r}, s38, -v12')
    for r in vals: e(f'v_exp_f32 v{r}, v{r}')
    e('s_nop 0')
    e(f'v_add_f32 v14, v{vals[0]}, v{vals[1]}'); e(f'v_add_f32 v15, v{vals[2]}, v{vals[3]}')
    for i in range(4, 20, 2):
        e(f'v_add_f32 v14, v14, v{vals[i]}'); e(f'v_add_f32 v15, v15, v{vals[i+1]}')
    B = 48
    for ap in range(2):
        e(f'v_cvt_pk_bf16_f32 v{B+4*ap}, v{P+4*ap}, v{P+4*ap+1}')
        e(f'v_cvt_pk_bf16_f32 v{B+4*ap+1}, v{P+4*ap+2}, v{P+4*ap+3}')
        e(f'v_cvt_pk_bf16_f32 v{B+4*ap+2}, v{P+4*ap+8}, v{P+4*ap+9}')
        e(f'v_cvt_pk_bf16_f32 v{B+4*ap+3}, v{P+4*ap+10}, v{P+4*ap+11}')
    e(f'''v_cvt_pk_bf16_f32 v{B+8}, v{SM}, v{SM+1}
    v_cvt_pk_bf16_f32 v{B+9}, v{SM+2}, v{SM+3}
    v_mov_b32 v{B+10}, 0
    v_mov_b32 v{B+11}, 0
    v_add_f32 v14, v14, v15
    v_mov_b32 v15, v14
    s_nop 1
    v_permlane32_swap_b32 v14, v15
    v_add_f32 v14, v14, v15
    v_rcp_f32 v14, v14
    s_waitcnt vmcnt(0)
    s_add_u32 s35, s32, {OX}
    ''')
    ACC = [80, 96]; T_ = [112, 116, 120, 124]
    e('v_mov_b32 v62, 0'); e('v_mov_b32 v63, 0'); e('v_mov_b32 v66, 0'); e('v_mov_b32 v67, 0')
    def pv(t):
        acc = v(ACC[t % 2],16); am = 60 + 4*(t % 2)
        e(f'v_mov_b32 v{am}, v{VM_+2*t}'); e(f'v_mov_b32 v{am+1}, v{VM_+2*t+1}')
        e(f'v_mfma_f32_32x32x16_bf16 {acc}, {v(V_+8*t,4)}, {v(B,4)}, 0')
        e(f'v_mfma_f32_32x32x16_bf16 {acc}, {v(V_+8*t+4,4)}, {v(B+4,4)}, {acc}')
        e(f'v_mfma_f32_32x32x16_bf16 {acc}, {v(am,4)}, {v(B+8,4)}, {acc}')
    def fin(t):
        A0 = ACC[t % 2]
        for Tp in range(2):
            r = A0 + 8*Tp; tt = T_[(2*t+Tp) % 4]
            for i in range(4):
                e(f'v_pk_mul_f32 {v(r+2*i,2)}, {v(r+2*i,2)}, {v(14,2)} op_sel_hi:[1,0]')
            for i in range(4):
                e(f'v_cvt_pk_bf16_f32 v{tt+i}, v{r+2*i}, v{r+2*i+1}')
            n = 2*t + Tp
            if n % 4 == 0 and n > 0: e('s_add_u32 s35, s35, 4096')
            e(f'buffer_store_dwordx4 {v(tt,4)}, v4, s[12:15], s35 offen offset:{1024*(n%4)} {sc}')
    pv(0)
    for t in range(1, 6):
        pv(t)
        e('s_nop 7')
        fin(t-1)
    e('s_nop 15')
    fin(5)

def emit_attn(e, L):
    e(f'''
    s_cmp_ge_u32 s2, 512
    s_cbranch_scc1 {L}_end
    s_load_dwordx2 s[6:7], s[0:1], 104
    v_lshrrev_b32 v20, 6, v0
    v_and_b32 v1, 63, v0
    s_nop 0
    v_readfirstlane_b32 s9, v20
    s_lshr_b32 s30, s2, 3
    s_and_b32 s31, s2, 7
    s_lshl_b32 s31, s31, 2
    s_waitcnt lgkmcnt(0)
    s_add_u32 s31, s31, s9
    ''')
    srd(e, 12, 6, 0x10000000)
    emit_attn_task(e)
    e('s_waitcnt vmcnt(0)')
    e(f'{L}_end:')
    e('s_endpgm')
```

```python
from asmgen import *
from layout import *
import struct, math
def f2u(x): return struct.unpack('<I', struct.pack('<f', x))[0]
DUMP = 210 * MB
PROFILE = False
G_C0 = -2.0*math.sqrt(2/math.pi)*1.4426950408889634
G_C1 = G_C0*0.044715

def wreg(t, ks, half=None):
    idx = t*40 + ks
    if idx < 64: f, base = a, 4*idx
    else: f, base = v, 192 + 4*(idx-64)
    return f(base,4) if half is None else f(base+2*half,2)

ACC = [64, 96]
FR = 128
TMP = 160

def emit_gemm1(e, L, ngroups=3, sc=''):
    e(f'''
    s_cmp_ge_u32 s2, {84*ngroups}
    s_cbranch_scc1 {L}_end
    s_load_dwordx2 s[6:7], s[0:1], 104
    v_lshrrev_b32 v20, 6, v0
    v_and_b32 v1, 63, v0
    s_nop 0
    v_readfirstlane_b32 s9, v20
    s_mul_i32 s10, s2, 781
    s_lshr_b32 s10, s10, 16
    s_mul_i32 s11, s10, 84
    s_sub_u32 s11, s2, s11           ; cg
    s_waitcnt lgkmcnt(0)
    ''')
    srd(e, 12, 6, 0x10000000)
    if PROFILE:
        e('s_memrealtime s[58:59]'); e('s_waitcnt lgkmcnt(0)')
    emit_gemm1_body(e, L, ngroups, sc)
    e(f'{L}_end:')
    e('s_endpgm')

def emit_gemm1_body(e, L, ngroups, sc, wait_hook=None, done_hook=None, sig_hook=None, fin_hook=None):
    if ngroups == 3:
        e('''s_mul_i32 s30, s10, 21
        s_min_u32 s31, s10, 1
        s_add_u32 s30, s30, s31          ; s0 = 0,22,43
        s_add_u32 s31, s10, 1
        s_mul_i32 s31, s31, 21
        s_add_u32 s31, s31, 1            ; s1 = 22,43,64''')
    else:
        e('s_mov_b32 s30, 0'); e('s_mov_b32 s31, 64')
    e(f'''
    s_mul_i32 s24, s11, 171
    s_lshr_b32 s24, s24, 12          ; cg/24
    s_mul_i32 s25, s24, 24
    s_sub_u32 s25, s11, s25          ; cgl
    s_cmp_eq_u32 s24, 3
    s_cbranch_scc1 {L}_wgu
    s_lshl_b32 s26, s24, 3
    s_add_u32 s26, s26, 16
    s_load_dwordx2 s[16:17], s[0:1], s26
    s_waitcnt lgkmcnt(0)
    s_and_b32 s17, s17, 0xffff
    s_mov_b32 s18, {640*12288:#x}
    s_mov_b32 s19, 0x00020000
    v_lshrrev_b32 v20, 5, v1
    s_lshl_b32 s26, s9, 1
    v_add_u32 v20, s26, v20
    s_mov_b32 s26, 12288
    v_mul_lo_u32 v20, v20, s26
    v_and_b32 v21, 31, v1
    v_lshl_add_u32 v20, v21, 4, v20
    s_lshl_b32 s27, s25, 9
    v_and_b32 v21, 15, v1
    v_lshrrev_b32 v22, 2, v21
    v_lshrrev_b32 v23, 5, v1
    v_lshl_add_u32 v22, v23, 3, v22  ; row = 8 g2 + (i>>2)
    v_lshlrev_b32 v22, 9, v22
    v_and_b32 v21, 3, v1
    v_lshl_add_u32 v22, v21, 3, v22
    v_bfe_u32 v21, v1, 4, 1
    v_lshl_add_u32 v22, v21, 5, v22
    s_lshl_b32 s26, s9, 7
    v_add_u32 v22, s26, v22
    v_add_u32 v23, 0x10000, v22
    ''')
    for ch in range(4):
        e(f's_lshl_b32 s28, s9, 10')
        for t in range(20):
            e(f'''s_mov_b32 m0, s28
            s_add_u32 s28, s28, 4096
            buffer_load_dwordx4 v20, s[16:19], s27 offen lds
            s_add_u32 s27, s27, {8*12288}''')
        e('s_waitcnt vmcnt(0)'); e('s_barrier')
        for k in range(10):
            ks = ch*10 + k
            for t in range(2):
                for hf in range(2):
                    off = (16*k + 4*hf)*512 + t*64
                    if off < 65536: e(f'ds_read_b64_tr_b16 {wreg(t,ks,hf)}, v22 offset:{off}')
                    else: e(f'ds_read_b64_tr_b16 {wreg(t,ks,hf)}, v23 offset:{off-65536}')
            if k % 3 == 2: e('s_waitcnt lgkmcnt(0)')
        e('s_waitcnt lgkmcnt(0)'); e('s_barrier')
    e(f's_branch {L}_wdone')
    e(f'''
    {L}_wgu:
    s_load_dwordx2 s[16:17], s[0:1], 64
    s_load_dwordx2 s[20:21], s[0:1], 72
    s_waitcnt lgkmcnt(0)
    s_and_b32 s17, s17, 0xffff
    s_mov_b32 s18, {640*3072:#x}
    s_mov_b32 s19, 0x00020000
    s_and_b32 s21, s21, 0xffff
    s_mov_b32 s22, {640*3072:#x}
    s_mov_b32 s23, 0x00020000
    v_lshrrev_b32 v20, 4, v1
    s_lshl_b32 s26, s9, 2
    v_add_u32 v20, s26, v20
    v_mul_u32_u24 v20, 3072, v20
    v_and_b32 v21, 15, v1
    v_lshl_add_u32 v20, v21, 4, v20
    s_lshl_b32 s27, s25, 8
    v_and_b32 v21, 15, v1
    v_lshrrev_b32 v22, 2, v21
    v_lshrrev_b32 v23, 5, v1
    v_lshl_add_u32 v22, v23, 3, v22
    v_lshlrev_b32 v22, 8, v22
    v_and_b32 v21, 3, v1
    v_lshl_add_u32 v22, v21, 3, v22
    v_bfe_u32 v21, v1, 4, 1
    v_lshl_add_u32 v22, v21, 5, v22
    s_lshl_b32 s26, s9, 6
    v_add_u32 v22, s26, v22
    v_add_u32 v23, 40960, v22
    ''')
    for ch in range(4):
        e(f's_lshl_b32 s28, s9, 10')
        for t in range(10):
            e(f'''s_mov_b32 m0, s28
            s_add_u32 s29, s28, 40960
            buffer_load_dwordx4 v20, s[16:19], s27 offen lds
            s_mov_b32 m0, s29
            s_add_u32 s28, s28, 4096
            buffer_load_dwordx4 v20, s[20:23], s27 offen lds
            s_add_u32 s27, s27, {16*3072}''')
        e('s_waitcnt vmcnt(0)'); e('s_barrier')
        for k in range(10):
            ks = ch*10 + k
            for t in range(2):
                for hf in range(2):
                    off = (16*k + 4*hf)*256
                    e(f'ds_read_b64_tr_b16 {wreg(t,ks,hf)}, v{22+t} offset:{off}')
            if k % 3 == 2: e('s_waitcnt lgkmcnt(0)')
        e('s_waitcnt lgkmcnt(0)'); e('s_barrier')
    e(f'{L}_wdone:')
    e(f'''
    v_lshlrev_b32 v3, 4, v1
    s_mul_i32 s26, s9, 10240
    v_add_u32 v2, s26, v3
    v_and_b32 v20, 31, v1
    v_lshrrev_b32 v21, 5, v1
    v_lshlrev_b32 v4, 5, v20
    v_lshl_add_u32 v4, v21, 4, v4
    v_bfe_u32 v22, v1, 4, 1
    v_lshlrev_b32 v5, 10, v22
    v_lshl_add_u32 v5, v21, 8, v5
    v_and_b32 v22, 15, v1
    v_lshl_add_u32 v5, v22, 4, v5
    s_lshl_b32 s26, s25, 2
    s_add_u32 s26, s26, s9
    s_lshl_b32 s36, s26, 12
    s_mov_b32 s27, {QX}
    s_cmp_eq_u32 s24, 1
    s_cselect_b32 s27, {KX}, s27
    s_cmp_eq_u32 s24, 2
    s_cselect_b32 s27, {VX}, s27
    s_add_u32 s36, s36, s27
    s_mov_b32 s37, {SEGQ}
    s_cmp_lg_u32 s24, 3
    s_cbranch_scc1 {L}_ob
    s_lshl_b32 s36, s25, 13
    s_lshl_b32 s27, s9, 11
    s_add_u32 s36, s36, s27
    s_add_u32 s36, s36, {HB}
    s_mov_b32 s37, {96*1024}
    {L}_ob:
    s_mul_i32 s26, s30, s37
    s_add_u32 s36, s36, s26
    s_mov_b32 s38, {DUMP}
    s_mul_i32 s39, s30, 40960
    s_add_u32 s39, s39, {XN}
    s_mul_i32 s40, s9, 10240
    s_mov_b32 s44, {f2u(G_C0):#x}
    s_mov_b32 s45, {f2u(G_C1):#x}
    ''')
    def dma_list():
        G = []
        for q in range(3):
            pre = f's_add_u32 s41, s48, s40\ns_add_u32 s41, s41, {4096*q}\ns_add_u32 s42, s39, {4096*q}\ns_mov_b32 m0, s41\ns_nop 0\n'
            for k in range(4 if q < 2 else 2):
                G.append((pre if k == 0 else '') + f'buffer_load_dwordx4 v2, s[12:15], s42 offen offset:{1024*k} lds')
        return G
    def adv_src():
        e(f'''s_add_u32 s49, s49, 1
        s_cmp_lt_u32 s49, s31
        s_cselect_b32 s27, 40960, 0
        s_add_u32 s39, s39, s27''')
    e('s_mov_b32 s49, s30')
    if wait_hook: wait_hook(e, first=True)
    e('s_mov_b32 s48, 0')
    for g in dma_list(): e(g)
    adv_src()
    e('s_mov_b32 s48, 40960')
    for g in dma_list(): e(g)
    e('s_mov_b32 s46, 0'); e('s_mov_b32 s47, 40960'); e('s_mov_b32 s48, 81920')
    e('s_waitcnt vmcnt(10)')
    e('s_barrier')
    e('v_mov_b32 v6, v3')
    e('v_add_u32 v7, s47, v3')
    for ks in range(3):
        e(f'ds_read_b128 {v(FR+4*(ks%8),4)}, v6 offset:{1024*ks}')
    def epi(kind, A0):
        P = []
        if kind == 'qk':
            for t in range(2):
                for Tp in range(2):
                    r = A0 + 16*t + 8*Tp; T_ = TMP + 4*((2*t+Tp) % 4)
                    for i in range(4): P.append(f'v_cvt_pk_bf16_f32 v{T_+i}, v{r+2*i}, v{r+2*i+1}')
                    P.append(f'buffer_store_dwordx4 {v(T_,4)}, v4, s[12:15], s38 offen offset:{1024*(2*t+Tp)} {sc}')
        elif kind == 'v':
            for t in range(2):
                for ap in range(2):
                    r = A0 + 16*t; T_ = TMP + 4*((2*t+ap) % 4)
                    P.append(f'v_cvt_pk_bf16_f32 v{T_}, v{r+4*ap}, v{r+4*ap+1}')
                    P.append(f'v_cvt_pk_bf16_f32 v{T_+1}, v{r+4*ap+2}, v{r+4*ap+3}')
                    P.append(f'v_cvt_pk_bf16_f32 v{T_+2}, v{r+4*ap+8}, v{r+4*ap+9}')
                    P.append(f'v_cvt_pk_bf16_f32 v{T_+3}, v{r+4*ap+10}, v{r+4*ap+11}')
                    P.append(f'buffer_store_dwordx4 {v(T_,4)}, v5, s[12:15], s38 offen offset:{2048*t + 512*ap} {sc}')
        else:
            for Tp in range(2):
                O_ = TMP + 4*Tp
                for i in range(4):
                    g0, g1 = A0 + 8*Tp + 2*i, A0 + 8*Tp + 2*i + 1
                    u0, u1 = g0 + 16, g1 + 16
                    x0, x1, y0, y1 = TMP+8, TMP+9, TMP+10, TMP+11
                    P += [f'v_cvt_pk_bf16_f32 v{x1}, v{g0}, v{g1}',
                          f'v_cvt_pk_bf16_f32 v{y1}, v{u0}, v{u1}',
                          f'v_lshlrev_b32 v{g0}, 16, v{x1}',
                          f'v_and_b32 v{g1}, 0xffff0000, v{x1}',
                          f'v_lshlrev_b32 v{u0}, 16, v{y1}',
                          f'v_and_b32 v{u1}, 0xffff0000, v{y1}',
                          f'v_mul_f32 v{x0}, v{g0}, v{g0}',
                          f'v_mul_f32 v{x1}, v{g1}, v{g1}',
                          f'v_mov_b32 v{y0}, s44',
                          f'v_mov_b32 v{y1}, s44',
                          f'v_fmac_f32 v{y0}, s45, v{x0}',
                          f'v_fmac_f32 v{y1}, s45, v{x1}',
                          f'v_mul_f32 v{y0}, v{y0}, v{g0}',
                          f'v_mul_f32 v{y1}, v{y1}, v{g1}',
                          f'v_exp_f32 v{y0}, v{y0}',
                          f'v_exp_f32 v{y1}, v{y1}',
                          f's_nop 0',
                          f'v_add_f32 v{y0}, 1.0, v{y0}',
                          f'v_add_f32 v{y1}, 1.0, v{y1}',
                          f'v_rcp_f32 v{y0}, v{y0}',
                          f'v_rcp_f32 v{y1}, v{y1}',
                          f's_nop 0',
                          f'v_mul_f32 v{y0}, v{y0}, v{g0}',
                          f'v_mul_f32 v{y1}, v{y1}, v{g1}',
                          f'v_cvt_pk_bf16_f32 v{x0}, v{y0}, v{y1}',
                          f'v_lshlrev_b32 v{y0}, 16, v{x0}',
                          f'v_and_b32 v{y1}, 0xffff0000, v{x0}',
                          f'v_mul_f32 v{y0}, v{y0}, v{u0}',
                          f'v_mul_f32 v{y1}, v{y1}, v{u1}',
                          f'v_cvt_pk_bf16_f32 v{O_+i}, v{y0}, v{y1}']
                P.append(f'buffer_store_dwordx4 {v(O_,4)}, v4, s[12:15], s38 offen offset:{1024*Tp} {sc}')
        return P
    def body(kind, par):
        P = epi(kind, ACC[1-par])
        PRE = 3; KB = 22
        D = dma_list()
        per = (len(P) + 35) // 36
        pi = 0; nst = 0; di = 0
        for ks in range(40):
            e(f's_waitcnt lgkmcnt({PRE-1})')
            for t in range(2):
                acc = v(ACC[par]+16*t,16); c = '0' if ks == 0 else acc
                fr = v(FR+4*(ks%8),4)
                if kind == 'v': e(f'v_mfma_f32_32x32x16_bf16 {acc}, {fr}, {wreg(t,ks)}, {c}')
                else: e(f'v_mfma_f32_32x32x16_bf16 {acc}, {wreg(t,ks)}, {fr}, {c}')
                if t == 0:
                    k2 = PRE + ks
                    if k2 < 40: e(f'ds_read_b128 {v(FR+4*(k2%8),4)}, v6 offset:{1024*k2}')
                    else: e(f'ds_read_b128 {v(FR+4*(k2%8),4)}, v7 offset:{1024*(k2-40)}')
                if ks >= 3:
                    n = per//2 + (per % 2 if t == 0 else 0)
                    for _ in range(n):
                        if pi < len(P):
                            e(P[pi]); nst += P[pi].startswith('buffer_store'); pi += 1
                if t == 1 and ks == KB:
                    e(f's_waitcnt vmcnt({nst})')
                    e('s_barrier')
                    adv_src()
                    if sig_hook: sig_hook(e, kind)
                if t == 1 and ks > KB and di < len(D):
                    e(D[di]); di += 1
        assert di == len(D)
        while pi < len(P): e(P[pi]); pi += 1
        if done_hook: done_hook(e)
        e(f'''s_mov_b32 s38, s36
        s_add_u32 s36, s36, s37
        s_mov_b32 s27, s46
        s_mov_b32 s46, s47
        s_mov_b32 s47, s48
        s_mov_b32 s48, s27
        v_mov_b32 v6, v7
        v_add_u32 v7, s47, v3
        s_add_u32 s30, s30, 1
        s_cmp_ge_u32 s30, s31''')
    if PROFILE:
        e('s_memtime s[50:51]'); e('s_memrealtime s[54:55]'); e('s_waitcnt lgkmcnt(0)')
    e(f'''s_cmp_eq_u32 s24, 3
    s_cbranch_scc1 {L}_gu
    s_cmp_eq_u32 s24, 2
    s_cbranch_scc1 {L}_v''')
    for kind in ['qk', 'v', 'gu']:
        e(f'{L}_{kind}:')
        body(kind, 0)
        e(f's_cbranch_scc1 {L}_{kind}_f0')
        body(kind, 1)
        e(f's_cbranch_scc0 {L}_{kind}')
        e('s_nop 15')
        for x in epi(kind, ACC[1]): e(x)
        e(f's_branch {L}_fin')
        e(f'{L}_{kind}_f0:')
        e('s_nop 15')
        for x in epi(kind, ACC[0]): e(x)
        e(f's_branch {L}_fin')
    e(f'{L}_fin:')
    if fin_hook: fin_hook(e)
    if PROFILE:
        e(f'''s_memtime s[52:53]
        s_waitcnt lgkmcnt(0)
        s_memrealtime s[56:57]
        s_waitcnt lgkmcnt(0)
        s_sub_u32 s52, s52, s50
        s_sub_u32 s56, s56, s54
        s_sub_u32 s54, s54, s58
        s_lshl_b32 s53, s2, 2
        s_add_u32 s53, s53, s9
        s_lshl_b32 s53, s53, 4
        s_add_u32 s53, s53, {PROF}
        v_mov_b32 v20, s53
        v_mov_b32 v24, s52
        v_mov_b32 v25, s56
        v_mov_b32 v26, s54
        v_mov_b32 v27, s58
        buffer_store_dwordx4 v[24:27], v20, s[12:15], 0 offen''')
    e('s_waitcnt vmcnt(0)')
```

```python
from asmgen import *
from layout import *

def emit_gemm2_tile(e, L, ldsc=''):
    ACC1, ACC2 = 64, 144
    BF = 32
    AF = 224
    e(f'''
    s_load_dwordx2 s[16:17], s[0:1], 40
    s_load_dwordx2 s[20:21], s[0:1], 80
    s_waitcnt lgkmcnt(0)
    s_and_b32 s17, s17, 0xffff
    s_mov_b32 s18, {6144*1280:#x}
    s_mov_b32 s19, 0x00020000
    s_and_b32 s21, s21, 0xffff
    s_mov_b32 s22, {1536*1280:#x}
    s_mov_b32 s23, 0x00020000
    ''')
    for n in range(5):
        e(f'''s_mul_i32 s32, s9, 320
        s_add_u32 s32, s32, {64*n}
        v_add_u32 v7, s32, v1
        v_mul_u32_u24 v8, 3277, v7
        v_lshrrev_b32 v8, 16, v8
        v_mul_u32_u24 v9, 20, v8
        v_sub_u32 v9, v7, v9
        v_mul_u32_u24 v8, 1280, v8
        v_lshl_add_u32 v{2+n}, v9, 4, v8''')
    e(f'''
    v_lshrrev_b32 v7, 5, v1
    v_and_b32 v8, 15, v1
    v_lshrrev_b32 v8, 2, v8
    v_lshl_add_u32 v8, v7, 2, v8
    v_mul_u32_u24 v10, 320, v8
    v_bfe_u32 v8, v1, 4, 1
    v_lshl_add_u32 v10, v8, 5, v10
    v_and_b32 v8, 3, v1
    v_lshl_add_u32 v10, v8, 3, v10
    v_and_b32 v8, 31, v1
    v_lshlrev_b32 v11, 5, v8
    v_lshl_add_u32 v11, v7, 4, v11
    s_add_u32 s33, s30, s9                ; seg
    s_mul_i32 s34, s33, {SEGQ}
    s_add_u32 s34, s34, {OX}
    s_mul_i32 s35, s33, {96*1024}
    s_add_u32 s35, s35, {HB}              ; H part
    s_mul_i32 s36, s31, 320
    s_mul_i32 s37, s9, 5120
    s_mov_b32 s38, 0
    s_mov_b32 s39, 20480
    s_mov_b32 s40, 40960
    ''')
    def dma_list(srd_, buf):
        G = []
        for n in range(5):
            G.append(f's_add_u32 s41, {buf}, s37\ns_add_u32 s41, s41, {1024*n}\ns_mov_b32 m0, s41\ns_nop 0\nbuffer_load_dwordx4 v{2+n}, s[{srd_}:{srd_+3}], s36 offen lds')
        return G
    e('s_mov_b32 s42, s34')
    def bload(slot):
        e(f'buffer_load_dwordx4 {v(BF+4*slot,4)}, v11, s[12:15], s42 offen {ldsc}')
        e('s_add_u32 s42, s42, 1024')
    for g in dma_list(16, 's38'): e(g)
    e(f's_add_u32 s36, s36, {64*1280}')
    for g in dma_list(16, 's39'): e(g)
    e(f's_add_u32 s36, s36, {64*1280}')
    for k in range(8): bload(k)
    e('s_waitcnt vmcnt(13)')
    e('s_barrier')
    e('v_add_u32 v9, s38, v10')
    AFS = [224, 12]
    def rdA(kk, aset):
        base = 'v9' if kk < 4 else 'v8'
        k4 = kk % 4
        for ct in range(5):
            for hf in range(2):
                off = (16*k4 + 8*hf)*320 + ct*64
                e(f'ds_read_b64_tr_b16 {v(AFS[aset]+4*ct+2*hf,2)}, {base} offset:{off}')
    def after_count(kk):
        seq = []
        for st in range(3):
            for k in range(4):
                if k == 2: seq += ['D']*5
                seq.append(('B', st, k))
        i0 = seq.index(('B', 0, kk)); i1 = seq.index(('B', 2, kk))
        return i1 - i0 - 1
    BWAIT = [after_count(k) for k in range(4)]
    VM_AFTER = 4
    assert BWAIT == [17]*4
    seq = ['D']*10 + [('B', k) for k in range(8)]
    def sim_wait(tag):
        i = seq.index(tag); return len(seq) - i - 1
    rdA(0, 0)
    nb = [8]
    def emit_stage_sim(acc, gk0, zero_first, srd_next, pre=None, static=None):
        bo = (gk0 % 8)
        for kk in range(4):
            aset = kk % 2
            if kk == 2:
                w = static['D'] if static else sim_waitD()
                e(f's_waitcnt vmcnt({w})')
                e('s_barrier')
                e('v_add_u32 v8, s39, v10')
                if pre: pre()
                for g in dma_list(srd_next, 's40'): e(g)
                seq.extend(['D']*5); dmark.append(len(seq))
                e(f's_add_u32 s36, s36, {64*1280}')
            e('s_waitcnt lgkmcnt(0)')
            rdA(kk+1, 1-aset)
            w = static[kk] if static else sim_wait(('B', gk0+kk))
            e(f's_waitcnt vmcnt({min(w,63)})')
            for ct in range(5):
                c = '0' if (zero_first and kk == 0) else v(acc+16*ct,16)
                e(f'v_mfma_f32_32x32x16_bf16 {v(acc+16*ct,16)}, {v(AFS[aset]+4*ct,4)}, {v(BF+4*(bo+kk),4)}, {c}')
            bload(bo+kk)
            seq.append(('B', gk0+kk+8))
        e('''s_mov_b32 s41, s38
        s_mov_b32 s38, s39
        s_mov_b32 s39, s40
        s_mov_b32 s40, s41
        v_mov_b32 v9, v8''')
    dmark = [5, 10]
    def sim_waitD():
        end = dmark[sim_waitD.st + 1]
        sim_waitD.st += 1
        return len(seq) - end
    sim_waitD.st = 0
    steady = {0: BWAIT[0], 1: BWAIT[1], 2: BWAIT[2], 3: BWAIT[3], 'D': 4}
    emit_stage_sim(ACC1, 0, True, 16)
    emit_stage_sim(ACC1, 4, False, 16)
    e(f's_mov_b32 s43, 2')
    e(f'{L}_loopA:')
    emit_stage_sim(ACC1, 0, False, 16, static=steady)
    emit_stage_sim(ACC1, 4, False, 16, static=steady)
    e(f'''s_add_u32 s43, s43, 2
    s_cmp_lt_u32 s43, 94
    s_cbranch_scc1 {L}_loopA''')
    e('s_mov_b32 s42, s35')
    def sw(): e('s_mul_i32 s36, s31, 320')
    emit_stage_sim(ACC1, 0, False, 20, pre=sw, static=steady)
    emit_stage_sim(ACC1, 4, False, 20, static=steady)
    emit_stage_sim(ACC2, 0, True, 20, static=steady)
    emit_stage_sim(ACC2, 4, False, 20, static=steady)
    e(f's_mov_b32 s43, 98')
    e(f'{L}_loopB:')
    emit_stage_sim(ACC2, 0, False, 20, static=steady)
    emit_stage_sim(ACC2, 4, False, 20, static=steady)
    e(f'''s_add_u32 s43, s43, 2
    s_cmp_lt_u32 s43, 120
    s_cbranch_scc1 {L}_loopB''')
    e(f'''
    s_waitcnt vmcnt(0) lgkmcnt(0)
    s_load_dwordx2 s[16:17], s[0:1], 0
    s_load_dwordx2 s[20:21], s[0:1], 88
    s_waitcnt lgkmcnt(0)
    s_and_b32 s17, s17, 0xffff
    s_mov_b32 s18, {2048*1280:#x}
    s_mov_b32 s19, 0x00020000
    s_and_b32 s21, s21, 0xffff
    s_mov_b32 s22, {2048*1280:#x}
    s_mov_b32 s23, 0x00020000
    v_and_b32 v2, 31, v1
    v_lshrrev_b32 v3, 5, v1
    v_mul_u32_u24 v4, 1280, v2
    v_lshl_add_u32 v4, v3, 3, v4          ; token*1280 + g2*8
    s_mul_i32 s36, s33, {32*1280}
    s_mul_i32 s37, s31, 320
    s_add_u32 s36, s36, s37
    ''')
    XR = 12
    for ct in range(5):
        for aa in range(4):
            e(f'buffer_load_dwordx2 {v(XR+8*ct+2*aa,2)}, v4, s[16:19], s36 offen offset:{64*ct+16*aa}')
    e('s_waitcnt vmcnt(0)')
    for ct in range(5):
        for aa in range(4):
            xr = XR+8*ct+2*aa; r1 = ACC1+16*ct+4*aa; r2 = ACC2+16*ct+4*aa
            for h in range(2):
                e(f'''v_cvt_pk_bf16_f32 v5, v{r1+2*h}, v{r1+2*h+1}
                v_cvt_pk_bf16_f32 v6, v{r2+2*h}, v{r2+2*h+1}
                v_lshlrev_b32 v7, 16, v5
                v_and_b32 v5, 0xffff0000, v5
                v_lshlrev_b32 v8, 16, v{xr+h}
                v_and_b32 v9, 0xffff0000, v{xr+h}
                v_add_f32 v7, v7, v8
                v_add_f32 v5, v5, v9
                v_cvt_pk_bf16_f32 v5, v7, v5
                v_lshlrev_b32 v7, 16, v5
                v_and_b32 v5, 0xffff0000, v5
                v_lshlrev_b32 v8, 16, v6
                v_and_b32 v9, 0xffff0000, v6
                v_add_f32 v7, v7, v8
                v_add_f32 v5, v5, v9
                v_cvt_pk_bf16_f32 v{xr+h}, v7, v5''')
            e(f'buffer_store_dwordx2 {v(xr,2)}, v4, s[20:23], s36 offen offset:{64*ct+16*aa}')

def emit_gemm2(e, L):
    e(f'''
    s_cmp_ge_u32 s2, 64
    s_cbranch_scc1 {L}_end
    s_load_dwordx2 s[6:7], s[0:1], 104
    v_lshrrev_b32 v20, 6, v0
    v_and_b32 v1, 63, v0
    s_nop 0
    v_readfirstlane_b32 s9, v20
    s_lshr_b32 s30, s2, 2
    s_lshl_b32 s30, s30, 2
    s_and_b32 s31, s2, 3
    s_waitcnt lgkmcnt(0)
    ''')
    srd(e, 12, 6, 0x10000000)
    emit_gemm2_tile(e, L)
    e('s_waitcnt vmcnt(0)')
    e(f'{L}_end:')
    e('s_endpgm')
```

```python
from asmgen import *
from layout import *
import struct
def f2u(x): return struct.unpack('<I', struct.pack('<f', x))[0]

def emit_ln(e, name):
    L = name
    e(f'''
    s_cmp_ge_u32 s2, 256
    s_cbranch_scc1 {L}_end
    s_load_dwordx2 s[4:5], s[0:1], 0
    s_load_dwordx2 s[6:7], s[0:1], 104
    v_lshrrev_b32 v20, 6, v0
    v_and_b32 v1, 63, v0
    s_nop 0
    v_readfirstlane_b32 s9, v20
    s_waitcnt lgkmcnt(0)
    ''')
    srd(e, 12, 6, 0x10000000)
    e(f'''
    s_cmp_ge_u32 s2, 64
    s_cbranch_scc1 {L}_init
    ''')
    srd(e, 8+8, 4, 2048*1280)
    e(f'''
    v_and_b32 v2, 31, v1
    v_lshrrev_b32 v3, 5, v1
    v_mul_u32_u24 v4, 1280, v2
    v_lshl_add_u32 v4, v3, 4, v4
    s_mul_i32 s20, s2, {32*1280}
    s_mul_i32 s21, s9, 320
    s_add_u32 s20, s20, s21
    ''')
    for k in range(10):
        e(f'buffer_load_dwordx4 {v(24+4*k,4)}, v4, s[16:19], s20 offen offset:{32*k}')
    e('s_waitcnt vmcnt(0)')
    for k in range(40):
        e(f'v_lshlrev_b32 v{64+2*k}, 16, v{24+k}')
        e(f'v_and_b32 v{65+2*k}, 0xffff0000, v{24+k}')
    def reduce_rows(acc, ldsoff):
        e(f'''
        v_mov_b32 v9, v{acc}
        s_nop 1
        v_permlane32_swap_b32 v{acc}, v9
        v_add_f32 v{acc}, v{acc}, v9
        v_lshlrev_b32 v10, 2, v2
        s_lshl_b32 s22, s9, 7
        v_add_u32 v10, s22, v10
        ds_write_b32 v10, v{acc} offset:{ldsoff}
        s_waitcnt lgkmcnt(0)
        s_barrier
        v_lshlrev_b32 v10, 2, v2
        ds_read_b32 v8, v10 offset:{ldsoff}
        ds_read_b32 v11, v10 offset:{ldsoff+128}
        ds_read_b32 v12, v10 offset:{ldsoff+256}
        ds_read_b32 v13, v10 offset:{ldsoff+384}
        s_waitcnt lgkmcnt(0)
        v_add_f32 v8, v8, v11
        v_add_f32 v12, v12, v13
        v_add_f32 v8, v8, v12
        ''')
    e('v_mov_b32 v5, 0'); e('v_mov_b32 v6, 0'); e('v_mov_b32 v7, 0'); e('v_mov_b32 v14, 0')
    for k in range(20):
        e(f'v_add_f32 v5, v5, v{64+4*k}'); e(f'v_add_f32 v6, v6, v{65+4*k}')
        e(f'v_add_f32 v7, v7, v{66+4*k}'); e(f'v_add_f32 v14, v14, v{67+4*k}')
    e('v_add_f32 v5, v5, v6'); e('v_add_f32 v7, v7, v14'); e('v_add_f32 v5, v5, v7')
    reduce_rows(5, 0)
    e(f'v_mul_f32 v15, {f2u(1.0/640):#x}, v8')
    e('v_mov_b32 v5, 0'); e('v_mov_b32 v6, 0'); e('v_mov_b32 v7, 0'); e('v_mov_b32 v14, 0')
    accs = [5,6,7,14]
    for k in range(80):
        e(f'v_sub_f32 v16, v{64+k}, v15')
        e(f'v_fmac_f32 v{accs[k%4]}, v16, v16')
    e('v_add_f32 v5, v5, v6'); e('v_add_f32 v7, v7, v14'); e('v_add_f32 v5, v5, v7')
    reduce_rows(5, 512)
    e(f'''
    v_mul_f32 v8, {f2u(1.0/640):#x}, v8
    v_cvt_pk_bf16_f32 v8, v8, v8
    v_lshlrev_b32 v8, 16, v8
    v_add_f32 v8, {f2u(1e-5):#x}, v8
    v_cvt_pk_bf16_f32 v8, v8, v8
    v_lshlrev_b32 v8, 16, v8
    v_sqrt_f32 v8, v8
    s_nop 0
    v_cvt_pk_bf16_f32 v8, v8, v8
    v_lshlrev_b32 v8, 16, v8
    v_rcp_f32 v9, v8
    v_cvt_pk_bf16_f32 v15, v15, v15
    v_lshlrev_b32 v15, 16, v15
    ''')
    for k in range(40):
        a0, a1 = 64+2*k, 65+2*k
        e(f'''v_sub_f32 v{a0}, v{a0}, v15
        v_sub_f32 v{a1}, v{a1}, v15
        v_cvt_pk_bf16_f32 v16, v{a0}, v{a1}
        v_lshlrev_b32 v{a0}, 16, v16
        v_and_b32 v{a1}, 0xffff0000, v16
        v_mul_f32 v16, v{a0}, v9
        v_mul_f32 v17, v{a1}, v9
        v_fma_f32 v18, -v16, v8, v{a0}
        v_fma_f32 v19, -v17, v8, v{a1}
        v_fmac_f32 v16, v18, v9
        v_fmac_f32 v17, v19, v9
        v_cvt_pk_bf16_f32 v{24+k}, v16, v17''')
    e(f'''
    v_lshlrev_b32 v4, 4, v1
    s_mul_i32 s20, s2, 40960
    s_mul_i32 s21, s9, 10240
    s_add_u32 s20, s20, s21
    s_add_u32 s20, s20, {XN}
    ''')
    for k in range(10):
        if k*1024 < 4096:
            e(f'buffer_store_dwordx4 {v(24+4*k,4)}, v4, s[12:15], s20 offen offset:{1024*k}')
        else:
            if k % 4 == 0: e('s_add_u32 s20, s20, 4096')
            e(f'buffer_store_dwordx4 {v(24+4*k,4)}, v4, s[12:15], s20 offen offset:{1024*(k%4)}')
    e(f's_branch {L}_fin')
    e(f'''
    {L}_init:
    s_sub_u32 s20, s2, 64
    s_mul_i32 s20, s20, 10240
    v_lshlrev_b32 v4, 4, v0
    v_mov_b32 v24, -1
    v_mov_b32 v25, -1
    v_mov_b32 v26, -1
    v_mov_b32 v27, -1
    buffer_store_dwordx4 v[24:27], v4, s[12:15], s20 offen
    s_add_u32 s20, s20, 4096
    buffer_store_dwordx4 v[24:27], v4, s[12:15], s20 offen
    s_add_u32 s20, s20, 4096
    v_cmp_gt_u32 vcc, 128, v0
    s_and_saveexec_b64 s[22:23], vcc
    s_cbranch_execz {L}_fin
    buffer_store_dwordx4 v[24:27], v4, s[12:15], s20 offen
    {L}_fin:
    s_waitcnt vmcnt(0)
    {L}_end:
    s_endpgm
    ''')
```

```python
MB = 1 << 20
SLOT = 0xA0000
X_OFF = 0
MEM_OFF = 0x50000
H1_OFF = 0x5A000
O_OFF = 0x7E000
RING_BYTES = 3 * SLOT
KX = 4 * MB
VX = 28 * MB
QX = 52 * MB
HB = 76 * MB
XN = 82 * MB
KM = 85 * MB
VM = 92 * MB
OX = 99 * MB
SEGQ = 32 * 12 * 1024
SEGM = 32 * 12 * 256
PROF = 200 * MB
```

```python
import sys
from asmgen import *
from k_ln import emit_ln
from k_gemm1 import emit_gemm1
from k_attn import emit_attn
from k_gemm2 import emit_gemm2
import chain2
HDR = open('parallel_sum__memory_aug_recurrent_mem_tr__geglu_ffn__prompt.s.ref').read().split('\n')
opt = {}
for x in sys.argv[2:]:
    if '=' in x:
        k, val = x.split('='); opt[k] = int(val)
A_ = A()
for l in HDR:
    if l.startswith(';') and '@launch' not in l and 'Override launch' not in l and 'grid=ceil' not in l: A_.L.append(l)
    if not l.startswith(';'): break
A_.L.append('; @launch kernel=ln_kernel grid=(256,1,1) block=(256,1,1) lds=1024')
A_.L.append('; @launch kernel=g1_kernel grid=(252,1,1) block=(256,1,1) lds=122880')
A_.L.append('; @launch kernel=chain_kernel grid=(256,1,1) block=(256,1,1) lds=102400')
A_.L.append('; @launch kernel=attn_kernel grid=(512,1,1) block=(256,1,1) lds=0')
A_.L.append('; @launch kernel=g2_kernel grid=(64,1,1) block=(256,1,1) lds=61440')
A_.L.append('.amdgcn_target "amdgcn-amd-amdhsa--gfx950"')
kernel_begin(A_, 'ln_kernel'); emit_ln(A_, 'LN')
kernel_begin(A_, 'g1_kernel'); emit_gemm1(A_, 'G1', ngroups=3)
kernel_begin(A_, 'chain_kernel')
C = chain2.Chain(A_, opt=opt)
C.role(); C.prologue(); C.main()
A_('L_end:'); A_('s_endpgm')
kernel_begin(A_, 'attn_kernel'); emit_attn(A_, 'AT')
kernel_begin(A_, 'g2_kernel'); emit_gemm2(A_, 'G2')
kernel_desc(A_, 'ln_kernel', 144)
kernel_desc(A_, 'g1_kernel', 512, accum=256)
kernel_desc(A_, 'chain_kernel', 512, accum=256)
kernel_desc(A_, 'attn_kernel', 256)
kernel_desc(A_, 'g2_kernel', 256)
open(sys.argv[1], 'w').write(A_.text())
```

```python
from asmgen import *
from layout import *
import struct, sys
def f2u(x): return struct.unpack('<I', struct.pack('<f', x))[0]
C1 = 192 ** -0.5 * 1.4426950408889634

L_MEM = 0
L_O = 10240
L_SC = 22528
L_VL = 34816
L_VX = 36864
L_KX = 45056
LDS_CHAIN = 98304

V_RELM0, V_RELM2, V_LDSB, V_RELO, V_PUB, V_H1A, V_H1B, V_XPUB, V_XPOLL, V_MEMPUB = 2,3,4,5,6,7,8,9,10,11
V_KXR, V_PF, V_KMST, V_VMST, V_SCW, V_SCR, V_VLW, V_PFW = 12,13,14,15,16,17,18,19
V_SENT = 24
V_PA, V_PB = 28, 40
V_FLG = 52
V_FLA = 54
V_VMD = 84
V_Q, V_K, V_V, V_D0 = 60, 64, 68, 72
V_QB, V_KB, V_KXF = 84, 86, 88
V_WO2 = 92
V_ST = 108
V_B1 = 108
V_FR = 112
V_ST2 = 56
V_ST3 = 188
SR = dict(c=8, w=9, j=10, hl=11, i=24, h=25, T=26, kh=27, cg=28)

def wo_reg(ks, half=None):
    if ks < 4: base, f = 240 + 4*ks, a
    elif ks < 20: base, f = 192 + 4*(ks-4), v
    else: base, f = V_WO2 + 4*(ks-20), v
    return f(base, 4) if half is None else f(base + 2*half, 2)

class Chain:
    def __init__(self, e, P='C', prof=False, nsteps=64, opt=None, slow=False, flags=False):
        self.e = e; self.P = P; self.prof = prof; self.nsteps = nsteps; self.opt = opt or {}
        self.stamps = []; self.slow = slow; self.flags = flags
        self.lsc = 'sc1' if slow else ''
        self.osc = 'sc1' if (flags and not self.opt.get('noosc')) else ''
        self.sig = flags and not self.opt.get('nosig')
    def o(self, k, d=0): return self.opt.get(k, d)
    def L(self, n): return f'{self.P}_{n}'
    def stamp(self, name):
        if self.o('trace'):
            n = len(self.stamps); self.stamps.append(name)
            self.e(f's_memrealtime s[{64+2*n}:{65+2*n}]')
            return
        if not self.prof: return
        n = len(self.stamps); self.stamps.append(name)
        self.e(f'''s_memtime s[58:59]
        s_waitcnt lgkmcnt(0)
        s_sub_u32 s57, s58, s56
        s_add_u32 s{64+n}, s{64+n}, s57
        s_mov_b32 s56, s58''')
    def fail(self, top):
        self.e(f'''s_add_u32 s50, s50, 1
        s_cmp_lt_u32 s50, 0x200000
        s_cbranch_scc1 {top}
        s_branch {self.L('abort')}''')
    def delay(self, n):
        while n > 0:
            k = min(n, 16); self.e(f's_nop {k-1}'); n -= k

    def load_strip(self, ptr_off, nbytes, rowstride, nrows):
        e = self.e
        e(f'''
        s_load_dwordx2 s[16:17], s[0:1], {ptr_off}
        s_waitcnt lgkmcnt(0)
        s_and_b32 s17, s17, 0xffff
        s_mov_b32 s18, {nbytes:#x}
        s_mov_b32 s19, 0x00020000
        v_lshrrev_b32 v20, 3, v1
        s_lshl_b32 s40, s9, 3
        v_add_u32 v20, s40, v20
        s_mov_b32 s41, {rowstride}
        v_mul_lo_u32 v20, v20, s41
        v_and_b32 v21, 7, v1
        v_lshlrev_b32 v21, 4, v21
        v_add_u32 v20, v20, v21
        s_mov_b32 s40, s42
        s_lshl_b32 s41, s9, 10
        ''')
        for t in range(nrows // 32):
            e(f'''
            s_mov_b32 m0, s41
            s_add_u32 s41, s41, 4096
            buffer_load_dwordx4 v20, s[16:19], s40 offen lds
            s_add_u32 s40, s40, {32*rowstride}
            ''')
        e('s_waitcnt vmcnt(0)')
        e('s_barrier')
        e('''
        v_and_b32 v21, 15, v1
        v_lshrrev_b32 v22, 2, v21
        v_lshlrev_b32 v23, 7, v22
        v_and_b32 v21, 3, v1
        v_lshlrev_b32 v21, 3, v21
        v_add_u32 v23, v23, v21
        s_lshl_b32 s40, s9, 5
        v_add_u32 v23, s40, v23
        v_lshrrev_b32 v21, 4, v1
        ''')

    def prologue(self):
        e = self.e; L = self.L
        e('''
        s_mul_i32 s11, s10, 43
        s_lshr_b32 s11, s11, 7          ; hl = j/3
        s_mul_i32 s24, s11, 3
        s_sub_u32 s24, s10, s24         ; i = j%3
        s_lshl_b32 s25, s8, 3
        s_add_u32 s25, s25, s11         ; h
        s_lshl_b32 s26, s24, 2
        s_add_u32 s26, s26, s9          ; T
        s_mul_i32 s27, s10, 26
        s_lshr_b32 s27, s27, 8          ; khalf = j/10
        s_mul_i32 s28, s27, 10
        s_sub_u32 s28, s10, s28         ; cg = j%10
        ''')
        if 'hsel' not in self.opt:
            e(f'''
            s_or_b32 s40, s8, s10
            s_or_b32 s40, s40, s9
            s_cmp_lg_u32 s40, 0
            s_cbranch_scc1 {L('nocal')}
            s_add_u32 s40, s49, {CAL_OFF}
            v_mov_b32 v20, s40
            v_add_u32 v21, 8192, v20
            v_mov_b32 v22, 0
            s_mov_b64 exec, 1
            s_mov_b32 s42, -1
            s_mov_b32 s43, -1
            ''')
            for rep in range(3):
                for hs in range(2):
                    e(f'''s_waitcnt vmcnt(0)
                    s_memtime s[52:53]
                    s_waitcnt lgkmcnt(0)
                    buffer_store_dword v22, v{20+hs}, s[12:15], 0 offen sc1
                    s_waitcnt vmcnt(0)
                    s_memtime s[54:55]
                    s_waitcnt lgkmcnt(0)
                    s_sub_u32 s54, s54, s52
                    s_min_u32 s{42+hs}, s{42+hs}, s54''')
            e(f'''
            s_cmp_lt_u32 s42, s43
            s_cselect_b32 s40, 1, 2
            v_mov_b32 v22, s40
            s_add_u32 s40, s49, {CTL+C_HSEL}
            v_mov_b32 v20, s40
            buffer_store_dword v22, v20, s[12:15], 0 offen sc1
            s_mov_b64 exec, -1
            {L('nocal')}:
            ''')
        e('''
        s_mul_i32 s42, s25, 384
        s_lshl_b32 s43, s24, 7
        s_add_u32 s42, s42, s43
        ''')
        for poff, abase in [(16, 0), (24, 80), (32, 160)]:
            self.load_strip(poff, 640*12288, 12288, 640)
            e('''v_lshlrev_b32 v21, 10, v21
            v_add_u32 v23, v23, v21
            v_add_u32 v22, 0x10000, v23''')
            for ks in range(20):
                for half in range(2):
                    off = (32*ks + 4*half) * 128
                    if off < 65536: e(f'ds_read_b64_tr_b16 {a(abase+4*ks+2*half,2)}, v23 offset:{off}')
                    else: e(f'ds_read_b64_tr_b16 {a(abase+4*ks+2*half,2)}, v22 offset:{off-65536}')
                if ks % 4 == 3: e('s_waitcnt lgkmcnt(0)')
            e('s_barrier')
        e(f'''
        s_cmp_ge_u32 s10, 20
        s_cbranch_scc1 {L('nowo')}
        s_lshl_b32 s42, s8, 3
        s_lshl_b32 s43, s27, 2
        s_add_u32 s42, s42, s43
        s_mul_i32 s42, s42, {192*1280}
        s_lshl_b32 s43, s28, 7
        s_add_u32 s42, s42, s43
        ''')
        self.load_strip(40, 6144*1280, 1280, 768)
        e('''v_lshlrev_b32 v21, 9, v21
        v_add_u32 v23, v23, v21
        v_add_u32 v22, 0x10000, v23''')
        for ks in range(24):
            hh, tp = ks // 6, ks % 6
            for half in range(2):
                off = (hh*192 + 32*tp + 16*half) * 128
                if off < 65536: e(f'ds_read_b64_tr_b16 {wo_reg(ks,half)}, v23 offset:{off}')
                else: e(f'ds_read_b64_tr_b16 {wo_reg(ks,half)}, v22 offset:{off-65536}')
            if ks % 4 == 3: e('s_waitcnt lgkmcnt(0)')
        e('s_barrier')
        e(f'{L("nowo")}:')
        if 'hsel' in self.opt:
            e(f's_mov_b32 s29, {self.opt["hsel"]*8192}')
        else:
            e(f'''
            s_add_u32 s40, s49, {CTL+C_HSEL}
            v_mov_b32 v20, s40
            {L('hs')}:
            buffer_load_dword v21, v20, s[12:15], 0 offen sc1
            s_waitcnt vmcnt(0)
            v_readfirstlane_b32 s40, v21
            s_nop 3
            s_cmp_lg_u32 s40, 0
            s_cbranch_scc1 {L('hsd')}
            ''')
            e('s_mov_b32 s50, 0'); self.fail(L('hs'))
            e(f'''{L('hsd')}:
            s_cmp_eq_u32 s40, 2
            s_cselect_b32 s29, 8192, 0''')
        e(f'''
        v_and_b32 v20, 15, v1            ; l&15
        v_lshrrev_b32 v21, 4, v1         ; g
        v_and_b32 v22, 7, v1             ; m&7
        v_bfe_u32 v23, v1, 3, 1          ; hi
        s_mul_i32 s40, s9, 160
        v_add_u32 v{V_RELM0}, s40, v1
        v_lshlrev_b32 v{V_RELM0}, 4, v{V_RELM0}
        v_add_u32 v{V_RELM2}, 128, v1
        v_min_u32 v{V_RELM2}, 159, v{V_RELM2}
        v_add_u32 v{V_RELM2}, s40, v{V_RELM2}
        v_lshlrev_b32 v{V_RELM2}, 4, v{V_RELM2}
        v_lshlrev_b32 v{V_LDSB}, 7, v21
        v_lshl_add_u32 v{V_LDSB}, v22, 4, v{V_LDSB}
        s_mul_i32 s40, s9, 3072
        v_lshlrev_b32 v{V_RELO}, 4, v1
        v_add_u32 v{V_RELO}, s40, v{V_RELO}
        v_add_u32 v{V_SCW}, {L_SC}, v{V_RELO}
        s_lshl_b32 s40, s9, 10
        v_lshlrev_b32 v{V_SCR}, 4, v1
        v_add_u32 v{V_SCR}, s40, v{V_SCR}
        v_mov_b32 v{V_PFW}, v{V_SCR}
        v_add_u32 v{V_SCR}, {L_SC}, v{V_SCR}
        s_lshl_b32 s40, s9, 8
        v_lshlrev_b32 v{V_VLW}, 2, v1
        v_add_u32 v{V_VLW}, s40, v{V_VLW}
        v_add_u32 v{V_VLW}, {L_VL}, v{V_VLW}
        s_mul_i32 s40, s25, 3
        s_add_u32 s40, s40, s24
        s_mul_i32 s40, s40, 1536
        s_lshl_b32 s41, s9, 9
        s_add_u32 s40, s40, s41
        s_add_u32 s40, s40, {H1_OFF}
        s_mul_i32 s41, s8, 24576
        s_lshr_b32 s42, s11, 2
        s_mul_i32 s42, s42, 12288
        s_add_u32 s41, s41, s42
        s_and_b32 s42, s11, 3
        s_mul_i32 s42, s42, 6
        s_lshl_b32 s43, s24, 1
        s_add_u32 s42, s42, s43
        s_lshl_b32 s42, s42, 9
        s_add_u32 s41, s41, s42
        s_add_u32 s41, s41, {O_OFF}
        s_cmp_eq_u32 s9, 3
        s_cselect_b32 s40, s41, s40
        v_add_u32 v{V_PUB}, s40, v{V_LDSB}
        s_mul_i32 s40, s25, 4608
        s_add_u32 s40, s40, {H1_OFF}
        v_lshlrev_b32 v{V_H1A}, 9, v23
        v_add_u32 v{V_H1A}, v{V_H1A}, v{V_LDSB}
        v_add_u32 v{V_H1A}, s40, v{V_H1A}
        v_add_u32 v{V_H1A}, 512, v{V_H1A}
        v_and_b32 v24, 1, v21
        v_lshlrev_b32 v{V_H1B}, 7, v24
        v_lshl_add_u32 v{V_H1B}, v22, 4, v{V_H1B}
        v_lshrrev_b32 v24, 1, v21
        v_lshl_add_u32 v24, v24, 1, v23
        v_lshl_add_u32 v{V_H1B}, v24, 2, v{V_H1B}
        v_add_u32 v{V_H1B}, s40, v{V_H1B}
        s_lshl_b32 s40, s28, 1
        s_lshr_b32 s41, s9, 1
        s_add_u32 s40, s40, s41
        s_lshl_b32 s40, s40, 14
        s_lshl_b32 s41, s8, 1
        s_add_u32 s41, s41, s27
        s_lshl_b32 s41, s41, 10
        s_add_u32 s40, s40, s41
        s_and_b32 s41, s9, 1
        s_lshl_b32 s41, s41, 9
        s_add_u32 s40, s40, s41
        s_add_u32 s40, s40, s29
        v_add_u32 v{V_XPUB}, s40, v{V_LDSB}
        s_lshl_b32 s40, s10, 14
        s_add_u32 s40, s40, s29
        v_lshlrev_b32 v{V_XPOLL}, 4, v1
        v_add_u32 v{V_XPOLL}, s40, v{V_XPOLL}
        v_lshrrev_b32 v24, 5, v1
        v_lshlrev_b32 v{V_MEMPUB}, 8, v24
        v_bfe_u32 v24, v1, 4, 1
        v_lshl_add_u32 v{V_MEMPUB}, v24, 7, v{V_MEMPUB}
        v_lshl_add_u32 v{V_MEMPUB}, v22, 4, v{V_MEMPUB}
        v_lshl_add_u32 v{V_MEMPUB}, v23, 3, v{V_MEMPUB}
        s_mul_i32 s40, s8, 10240
        s_lshl_b32 s41, s10, 9
        s_add_u32 s40, s40, s41
        s_add_u32 s40, s40, {MEM_OFF}
        v_add_u32 v{V_MEMPUB}, s40, v{V_MEMPUB}
        v_lshlrev_b32 v{V_KXR}, 5, v20
        v_and_b32 v24, 1, v21
        v_lshl_add_u32 v{V_KXR}, v24, 4, v{V_KXR}
        v_lshrrev_b32 v24, 1, v21
        v_lshl_add_u32 v{V_KXR}, v24, 3, v{V_KXR}
        s_lshl_b32 s40, s9, 10
        v_add_u32 v{V_KXR}, s40, v{V_KXR}
        v_add_u32 v{V_KXR}, {L_KX}, v{V_KXR}
        s_mul_i32 s40, s25, 12288
        s_lshl_b32 s41, s26, 10
        s_add_u32 s41, s41, s40
        v_lshlrev_b32 v{V_PF}, 4, v1
        v_add_u32 v{V_PF}, s41, v{V_PF}
        s_mul_i32 s40, s25, 3072
        s_lshl_b32 s41, s26, 8
        s_add_u32 s40, s40, s41
        v_lshlrev_b32 v{V_KMST}, 5, v22
        v_and_b32 v24, 1, v21
        v_lshl_add_u32 v{V_KMST}, v24, 4, v{V_KMST}
        v_lshrrev_b32 v24, 1, v21
        v_lshl_add_u32 v{V_KMST}, v24, 3, v{V_KMST}
        s_add_u32 s41, s40, {KM}
        v_add_u32 v{V_KMST}, s41, v{V_KMST}
        v_lshlrev_b32 v{V_VMST}, 7, v21
        v_lshl_add_u32 v{V_VMST}, v20, 3, v{V_VMST}
        s_add_u32 s41, s40, {VM}
        v_add_u32 v{V_VMST}, s41, v{V_VMST}
        v_mov_b32 v{V_SENT}, -1
        v_mov_b32 v{V_SENT+1}, -1
        v_mov_b32 v{V_SENT+2}, -1
        v_mov_b32 v{V_SENT+3}, -1
        s_mov_b32 s44, 0x00ff00ff
        s_mov_b32 s45, 0x00ff00ff
        s_mov_b32 s46, {f2u(C1):#x}
        s_mul_i32 s47, s8, 10240
        s_add_u32 s47, s47, {MEM_OFF}
        s_mul_i32 s48, s8, 24576
        s_mul_i32 s40, s27, 12288
        s_add_u32 s48, s48, s40
        s_add_u32 s48, s48, {O_OFF}
        s_mov_b32 s30, 0
        s_mov_b32 s31, s49
        s_add_u32 s33, s49, {SLOT}
        s_add_u32 s32, s49, {2*SLOT}
        s_mov_b32 s34, 0
        s_mov_b32 s35, 0
        s_mov_b32 s50, 0
        s_mov_b32 s51, 0
        s_mul_i32 s40, s25, 3
        s_add_u32 s40, s40, s24
        s_lshl_b32 s40, s40, 2
        s_add_u32 s40, s40, s49
        s_add_u32 s40, s40, {CTL + C_FG1 + 96*4}
        v_mov_b32 v{V_FLA}, s40
        ''')
        e(f'''
        s_cmp_ge_u32 s10, 20
        s_cbranch_scc1 {L('nomem0')}
        s_cmp_lg_u32 s9, 0
        s_cbranch_scc1 {L('nomem0')}
        s_load_dwordx2 s[16:17], s[0:1], 8
        s_waitcnt lgkmcnt(0)
        s_and_b32 s17, s17, 0xffff
        s_mov_b32 s18, 10240
        s_mov_b32 s19, 0x00020000
        v_and_b32 v20, 7, v1
        v_mul_u32_u24 v20, 1280, v20
        v_lshrrev_b32 v21, 3, v1
        v_and_b32 v21, 3, v21
        v_lshl_add_u32 v20, v21, 4, v20
        s_lshl_b32 s40, s10, 6
        v_add_u32 v20, s40, v20
        buffer_load_dwordx4 v[28:31], v20, s[16:19], 0 offen
        v_and_b32 v21, 31, v1
        v_lshlrev_b32 v21, 4, v21
        s_lshl_b32 s40, s10, 9
        s_add_u32 s40, s40, s47
        v_add_u32 v21, s40, v21
        s_waitcnt vmcnt(0)
        buffer_store_dwordx4 v[28:31], v21, s[12:15], s31 offen {self.lsc}
        {L('nomem0')}:
        ''')
        self.wait_flags(1, 'f0')
        ld = 'sc1' if self.flags else ''
        e(f'''
        s_mov_b32 s40, {KX}
        s_mov_b32 s41, {VX}
        buffer_load_dwordx4 {v(V_ST,4)}, v{V_PF}, s[12:15], s40 offen {ld}
        buffer_load_dwordx4 {v(V_ST2,4)}, v{V_PF}, s[12:15], s41 offen {ld}
        s_waitcnt vmcnt(0)
        ds_write_b128 v{V_PFW}, {v(V_ST,4)} offset:{L_KX}
        ds_write_b128 v{V_PFW}, {v(V_ST2,4)} offset:{L_VX}
        s_waitcnt lgkmcnt(0)
        s_barrier
        ''')

    def signal(self, tag, val):
        e = self.e; L = self.L
        e(f'''s_cmp_lg_u32 s9, 1
        s_cbranch_scc1 {L(tag)}
        s_mul_i32 s40, s8, 24
        s_add_u32 s40, s40, s10
        s_lshl_b32 s40, s40, 7
        s_add_u32 s40, s40, s49
        s_add_u32 s40, s40, {CTL + C_FCH}
        v_mov_b32 v20, s40
        v_mov_b32 v21, {val}
        s_mov_b64 exec, 1
        buffer_store_dword v21, v20, s[12:15], 0 offen sc1
        s_mov_b64 exec, -1
        {L(tag)}:''')

    def wait_flags(self, need, tag):
        if not self.flags: return
        e = self.e; L = self.L
        e(f'''{L(tag)}:
        buffer_load_dword v{V_FLG}, v{V_FLA}, s[12:15], 0 offen sc1
        buffer_load_dword v{V_FLG+1}, v{V_FLA}, s[12:15], 0 offen offset:384 sc1
        s_waitcnt vmcnt(0)
        v_min_u32 v20, v{V_FLG}, v{V_FLG+1}
        s_nop 0
        v_readfirstlane_b32 s40, v20
        s_nop 3
        s_cmp_ge_u32 s40, {need}
        s_cbranch_scc1 {L(tag+'d')}
        s_sleep 8''')
        self.fail(L(tag))
        e(f'{L(tag+"d")}:')

    def poll3(self, name, loads, soff, ldsw, between=None):
        e = self.e; L = self.L
        def issue(R):
            for n, (va, off) in enumerate(loads):
                e(f'buffer_load_dwordx4 {v(R+4*n,4)}, v{va}, s[12:15], {soff} offen offset:{off} sc1')
        def check(R):
            e(f'''v_max3_u32 v20, v{R}, v{R+1}, v{R+2}
            v_max3_u32 v21, v{R+3}, v{R+4}, v{R+5}
            v_max3_u32 v20, v20, v{R+6}, v{R+7}
            v_max3_u32 v21, v21, v{R+8}, v{R+9}
            v_max3_u32 v20, v20, v{R+10}, v{R+11}
            v_max_u32 v20, v20, v21
            v_cmp_eq_u32 vcc, -1, v20''')
        def wr(R):
            for n, (va, off) in enumerate(ldsw):
                e(f'ds_write_b128 v{va}, {v(R+4*n,4)} offset:{off}')
        self.delay(self.o('d_'+name, 0))
        issue(V_PA)
        self.delay(self.o('g_'+name, 16))
        issue(V_PB)
        e(f'{L(name)}:')
        e('s_waitcnt vmcnt(3)')
        check(V_PA)
        e(f's_cbranch_vccz {L(name+"A")}')
        issue(V_PA)
        e('s_waitcnt vmcnt(3)')
        check(V_PB)
        e(f's_cbranch_vccz {L(name+"B")}')
        issue(V_PB)
        self.fail(L(name))
        e(f'{L(name+"B")}:')
        wr(V_PB)
        e(f's_branch {L(name+"J")}')
        e(f'{L(name+"A")}:')
        wr(V_PA)
        e(f'{L(name+"J")}:')
        if self.o('trace'): self.stamp(name+'_det')
        if between: between()
        e('s_waitcnt lgkmcnt(0)')
        e('s_barrier')

    def main(self):
        e = self.e; NS = self.nsteps; L = self.L; lsc = self.lsc; osc = self.osc
        ld = 'sc1' if (self.flags and not self.opt.get('nold')) else ''
        if self.o('clk'):
            e('s_memtime s[90:91]'); e('s_memrealtime s[92:93]'); e('s_waitcnt lgkmcnt(0)')
        e(f'{L("step")}:')
        self.stamp('top')
        e('s_add_u32 s40, s31, s47')
        def prefetch():
            e(f'''s_cmp_eq_u32 s9, 3
            s_cbranch_scc1 {L('pf1')}
            s_add_u32 s36, s34, {SEGQ}
            s_cmp_eq_u32 s30, {NS-1}
            s_cselect_b32 s36, s34, s36''')
            if self.flags:
                e(f'''s_add_u32 s37, s30, 2
                s_min_u32 s37, s37, {NS}
                v_min_u32 v20, v{V_FLG}, v{V_FLG+1}
                s_nop 0
                v_readfirstlane_b32 s38, v20
                s_nop 3
                s_cmp_ge_u32 s38, s37
                s_cbranch_scc1 {L('pfok')}''')
                self.wait_flags('s37', 'pfw')
                e(f'''{L('pfok')}:
                buffer_load_dword v{V_FLG}, v{V_FLA}, s[12:15], 0 offen sc1
                buffer_load_dword v{V_FLG+1}, v{V_FLA}, s[12:15], 0 offen offset:384 sc1''')
            e(f'''s_add_u32 s37, s36, {KX}
            s_add_u32 s38, s36, {VX}
            buffer_load_dwordx4 {v(V_ST,4)}, v{V_PF}, s[12:15], s37 offen {ld}
            buffer_load_dwordx4 {v(V_ST2,4)}, v{V_PF}, s[12:15], s38 offen {ld}
            s_cmp_eq_u32 s9, 0
            s_cbranch_scc1 {L('pf1')}
            s_cmp_eq_u32 s9, 1
            s_cselect_b32 s37, s37, s38
            s_cselect_b32 s39, 2, 1
            s_lshl_b32 s39, s39, 10
            s_add_u32 s37, s37, s39
            buffer_load_dwordx4 {v(V_KXF,4)}, v{V_PF}, s[12:15], s37 offen {ld}
            {L('pf1')}:''')
        if self.o('pfpos', 0) == 0:
            self.poll3('p0', [(V_RELM0,0),(V_RELM0,1024),(V_RELM2,0)], 's40', [(V_RELM0,0),(V_RELM0,1024),(V_RELM2,0)], between=prefetch)
        else:
            self.poll3('p0', [(V_RELM0,0),(V_RELM0,1024),(V_RELM2,0)], 's40', [(V_RELM0,0),(V_RELM0,1024),(V_RELM2,0)])
        self.stamp('P0')
        KXF = V_D0 + 8 - 0
        KXF = V_V
        PRE = 3
        for ks in range(PRE):
            e(f'ds_read_b128 {v(V_FR+4*ks,4)}, v{V_LDSB} offset:{512*ks}')
        for ks in range(20):
            issued = min(20, PRE + ks)
            extra = 2 if ks >= 17 else 0
            if ks <= 16: e(f's_waitcnt lgkmcnt({issued - ks - 1})')
            else: e(f's_waitcnt lgkmcnt({issued - ks - 1 + 2})')
            c0 = '0' if ks == 0 else v(V_Q,4)
            c1 = '0' if ks == 0 else v(V_K,4)
            e(f'v_mfma_f32_16x16x32_bf16 {v(V_Q,4)}, {a(4*ks,4)}, {v(V_FR+4*ks,4)}, {c0}')
            if PRE + ks < 20:
                e(f'ds_read_b128 {v(V_FR+4*(PRE+ks),4)}, v{V_LDSB} offset:{512*(PRE+ks)}')
            e(f'v_mfma_f32_16x16x32_bf16 {v(V_K,4)}, {a(80+4*ks,4)}, {v(V_FR+4*ks,4)}, {c1}')
            if ks == 15: e(f'v_add_u32 v20, s51, v{V_KXR}')
            if ks == 16:
                e(f'ds_read_b64 {v(KXF,2)}, v20')
                e(f'ds_read_b64 {v(KXF+2,2)}, v20 offset:512')
        e(f'''
        s_waitcnt lgkmcnt(0)
        s_nop 5
        v_cvt_pk_bf16_f32 v{V_QB}, v{V_Q}, v{V_Q+1}
        v_cvt_pk_bf16_f32 v{V_QB+1}, v{V_Q+2}, v{V_Q+3}
        v_cvt_pk_bf16_f32 v{V_KB}, v{V_K}, v{V_K+1}
        v_cvt_pk_bf16_f32 v{V_KB+1}, v{V_K+2}, v{V_K+3}
        v_mfma_f32_16x16x16_bf16 {v(V_D0+4,4)}, {v(KXF,2)}, {v(V_QB,2)}, 0
        v_mfma_f32_16x16x16_bf16 {v(V_D0+8,4)}, {v(KXF+2,2)}, {v(V_QB,2)}, 0
        v_mfma_f32_16x16x16_bf16 {v(V_D0,4)}, {v(V_KB,2)}, {v(V_QB,2)}, 0
        s_nop 5
        ds_write_b128 v{V_SCW}, {v(V_D0+4,4)} offset:1024
        ds_write_b128 v{V_SCW}, {v(V_D0+8,4)} offset:2048
        s_nop 3
        ds_write_b128 v{V_SCW}, {v(V_D0,4)}
        s_waitcnt lgkmcnt(0)
        s_barrier
        ''')
        self.stamp('QK')
        R = [V_Q, V_D0, V_D0+4, V_D0+8]
        VXF = V_FR; S = V_FR + 16; S2 = V_FR + 32; W = V_FR + 48
        S = V_PA;
        def h1issue(Rr):
            for p in range(3):
                e(f'buffer_load_dwordx4 {v(Rr+4*p,4)}, v{V_H1A}, s[12:15], s31 offen offset:{1536*p} sc1')
                e(f'buffer_load_dword v{Rr+12+p}, v{V_H1B}, s[12:15], s31 offen offset:{1536*p} sc1')
        e(f'''
        s_cmp_eq_u32 s9, 3
        s_cbranch_scc1 {L('w3v')}
        ds_read_b128 {v(R[0],4)}, v{V_SCR}
        ds_read_b128 {v(R[1],4)}, v{V_SCR} offset:3072
        ds_read_b128 {v(R[2],4)}, v{V_SCR} offset:6144
        ds_read_b128 {v(R[3],4)}, v{V_SCR} offset:9216
        s_waitcnt lgkmcnt(2)
        v_pk_add_f32 {v(R[0],2)}, {v(R[0],2)}, {v(R[1],2)}
        v_pk_add_f32 {v(R[0]+2,2)}, {v(R[0]+2,2)}, {v(R[1]+2,2)}
        s_waitcnt lgkmcnt(0)
        v_pk_add_f32 {v(R[2],2)}, {v(R[2],2)}, {v(R[3],2)}
        v_pk_add_f32 {v(R[2]+2,2)}, {v(R[2]+2,2)}, {v(R[3]+2,2)}
        v_pk_add_f32 {v(R[0],2)}, {v(R[0],2)}, {v(R[2],2)}
        v_pk_add_f32 {v(R[0]+2,2)}, {v(R[0]+2,2)}, {v(R[2]+2,2)}
        s_mov_b64 exec, s[44:45]
        buffer_store_dwordx4 {v(R[0],4)}, v{V_PUB}, s[12:15], s31 offen {lsc}
        s_mov_b64 exec, -1
        ''')
        self.stamp('H1pub')
        for ks in range(20):
            c0 = '0' if ks == 0 else v(V_V,4)
            e(f'v_mfma_f32_16x16x32_bf16 {v(V_V,4)}, {v(V_FR+4*ks,4)}, {a(160+4*ks,4)}, {c0}')
            if ks == 0:
                e(f'''s_mov_b64 exec, s[44:45]
                buffer_store_dwordx4 {v(V_SENT,4)}, v{V_PUB}, s[12:15], s32 offen {lsc}
                s_mov_b64 exec, -1''')
        e(f'''
        s_nop 7
        v_cvt_pk_bf16_f32 v{V_QB}, v{V_V}, v{V_V+1}
        v_cvt_pk_bf16_f32 v{V_QB+1}, v{V_V+2}, v{V_V+3}
        s_mov_b32 exec_hi, 0
        v_mov_b32 v22, v{V_QB}
        s_mov_b32 exec_lo, 0
        s_mov_b32 exec_hi, -1
        v_mov_b32 v22, v{V_QB+1}
        s_mov_b32 exec_lo, -1
        ds_write_b32 v{V_VLW}, v22
        s_cmp_eq_u32 s30, {NS-1}
        s_cbranch_scc1 {L('w3last')}
        ''')
        if self.o('trace'): self.stamp('Vdone')
        e(f'''
        s_waitcnt vmcnt(2)
        s_xor_b32 s40, s51, 4096
        v_add_u32 v21, s40, v{V_PFW}
        ds_write_b128 v21, {v(V_ST,4)} offset:{L_KX}
        ds_write_b128 v21, {v(V_ST2,4)} offset:{L_VX}
        s_cmp_eq_u32 s9, 0
        s_cbranch_scc1 {L('vxw')}
        s_cmp_eq_u32 s9, 1
        s_mov_b32 s41, {L_VX+1024}
        s_cselect_b32 s41, {L_KX+2048}, s41
        v_add_u32 v21, s41, v21
        ds_write_b128 v21, {v(V_KXF,4)}
        {L('vxw')}:
        s_waitcnt lgkmcnt(0)
        ''')
        if self.o('trace'): self.stamp('preB3a')
        e('s_barrier')
        self.stamp('Vw012')
        e(f's_branch {L("p3done")}')
        e(f'{L("w3v")}:')
        k_iss = self.o('k_h1', 13)
        for ks in range(20):
            c0 = '0' if ks == 0 else v(V_V,4)
            e(f'v_mfma_f32_16x16x32_bf16 {v(V_V,4)}, {v(V_FR+4*ks,4)}, {a(160+4*ks,4)}, {c0}')
            if ks == k_iss: h1issue(S)
        e(f'''
        v_lshlrev_b32 v21, 4, v1
        v_add_u32 v21, s51, v21
        ds_read_b128 {v(VXF,4)}, v21 offset:{L_VX}
        ds_read_b128 {v(VXF+4,4)}, v21 offset:{L_VX+1024}
        ds_read_b128 {v(VXF+8,4)}, v21 offset:{L_VX+2048}
        ds_read_b128 {v(VXF+12,4)}, v21 offset:{L_VX+3072}
        s_nop 2
        v_cvt_pk_bf16_f32 v{V_VMD}, v{V_V}, v{V_V+1}
        v_cvt_pk_bf16_f32 v{V_VMD+1}, v{V_V+2}, v{V_V+3}
        s_mov_b32 exec_hi, 0
        v_mov_b32 v22, v{V_VMD}
        s_mov_b32 exec_lo, 0
        s_mov_b32 exec_hi, -1
        v_mov_b32 v22, v{V_VMD+1}
        s_mov_b32 exec_lo, -1
        ds_write_b32 v{V_VLW}, v22
        s_cmp_eq_u32 s30, {NS-1}
        s_cbranch_scc1 {L('w3last')}
        ''')
        self.stamp('Vw3')
        S2 = V_FR + 32
        def h1sum(Rr, D):
            e(f'''v_pk_add_f32 {v(D,2)}, {v(Rr,2)}, {v(Rr+4,2)}
            v_pk_add_f32 {v(D+2,2)}, {v(Rr+2,2)}, {v(Rr+6,2)}
            v_add_f32 v{D+4}, v{Rr+12}, v{Rr+13}
            v_pk_add_f32 {v(D,2)}, {v(D,2)}, {v(Rr+8,2)}
            v_pk_add_f32 {v(D+2,2)}, {v(D+2,2)}, {v(Rr+10,2)}
            v_add_f32 v{D+4}, v{D+4}, v{Rr+14}
            v_add_f32 v20, v{D}, v{D+1}
            v_add_f32 v21, v{D+2}, v{D+3}
            v_add_f32 v20, v20, v{D+4}
            v_add_f32 v20, v20, v21
            v_cmp_u_f32 vcc, v20, v20''')
        D = V_Q
        h1issue(S2)
        e(f'{L("p3poll")}:')
        e('s_waitcnt vmcnt(6)')
        h1sum(S, D)
        e(f's_cbranch_vccz {L("p3d")}')
        h1issue(S)
        e('s_waitcnt vmcnt(6)')
        h1sum(S2, D)
        e(f's_cbranch_vccz {L("p3d")}')
        h1issue(S2)
        self.fail(L('p3poll'))
        e(f'{L("p3d")}:')
        self.stamp('H1poll')
        B2 = W; VD = W + 2
        e(f'''
        v_max3_f32 v20, v{D}, v{D+1}, v{D+2}
        v_max3_f32 v20, v20, v{D+3}, v{D+4}
        s_nop 1
        v_max_f32_dpp v20, v20, v20 row_ror:8 row_mask:0xf bank_mask:0xf
        v_mov_b32 v21, v20
        s_nop 1
        v_permlane16_swap_b32 v20, v21
        v_max_f32 v20, v20, v21
        v_mov_b32 v21, v20
        s_nop 1
        v_permlane32_swap_b32 v20, v21
        v_max_f32 v20, v20, v21
        v_mul_f32 v20, s46, v20
        v_fma_f32 v{D}, v{D}, s46, -v20
        v_fma_f32 v{D+1}, v{D+1}, s46, -v20
        v_fma_f32 v{D+2}, v{D+2}, s46, -v20
        v_fma_f32 v{D+3}, v{D+3}, s46, -v20
        v_fma_f32 v{D+4}, v{D+4}, s46, -v20
        v_exp_f32 v{D}, v{D}
        v_exp_f32 v{D+1}, v{D+1}
        v_exp_f32 v{D+2}, v{D+2}
        v_exp_f32 v{D+3}, v{D+3}
        v_exp_f32 v{D+4}, v{D+4}
        s_waitcnt lgkmcnt(0)
        ''')
        if self.o('trace'): self.stamp('w3preB3a')
        e(f'''
        s_barrier
        v_lshlrev_b32 v21, 2, v1
        ds_read_b32 v{VD}, v21 offset:{L_VL}
        ds_read_b32 v{VD+2}, v21 offset:{L_VL+256}
        ds_read_b32 v{VD+4}, v21 offset:{L_VL+512}
        ds_read_b32 v{VD+6}, v21 offset:{L_VL+768}
        v_cvt_pk_bf16_f32 v{V_B1}, v{D}, v{D+1}
        v_cvt_pk_bf16_f32 v{V_B1+1}, v{D+2}, v{D+3}
        v_mov_b32_dpp v23, v{D+4} row_ror:8 row_mask:0xf bank_mask:0xf
        v_add_f32 v22, v{D}, v{D+1}
        v_mov_b32_dpp v{V_B1+2}, v{V_B1} row_ror:8 row_mask:0xf bank_mask:0xf
        v_mov_b32_dpp v{V_B1+3}, v{V_B1+1} row_ror:8 row_mask:0xf bank_mask:0xf
        v_cvt_pk_bf16_f32 v{B2}, v{D+4}, v23
        v_mov_b32 v{B2+1}, 0
        v_add_f32 v23, v{D+2}, v{D+3}
        v_add_f32 v22, v22, v{D+4}
        ''')
        PV = V_D0 - 4
        for t in range(4):
            e(f'v_mfma_f32_16x16x32_bf16 {v(PV+4*t,4)}, {v(VXF+4*t,4)}, {v(V_B1,4)}, 0')
            if t == 0: e('v_add_f32 v22, v22, v23'); e(f'v_mov_b32 v{VD+1}, 0')
            if t == 1: e(f'v_mov_b32 v{VD+3}, 0'); e('v_add_f32_dpp v22, v22, v22 row_ror:8 row_mask:0xf bank_mask:0xf')
            if t == 2: e(f'v_mov_b32 v{VD+5}, 0'); e('v_mov_b32 v23, v22')
            if t == 3: e(f'v_mov_b32 v{VD+7}, 0')
        e(f'''
        s_waitcnt lgkmcnt(0)
        v_permlane16_swap_b32 v22, v23
        v_add_f32 v22, v22, v23
        v_mov_b32 v23, v22
        ''')
        for t in range(4):
            e(f'v_mfma_f32_16x16x16_bf16 {v(PV+4*t,4)}, {v(VD+2*t,2)}, {v(B2,2)}, {v(PV+4*t,4)}')
            if t == 1: e('v_permlane32_swap_b32 v22, v23')
        e(f'''
        v_add_f32 v22, v22, v23
        v_rcp_f32 v22, v22
        s_nop 3
        ''')
        O = V_Q
        for t in range(4):
            e(f'v_pk_mul_f32 {v(PV+4*t,2)}, {v(PV+4*t,2)}, {v(22,2)} op_sel_hi:[1,0]')
            e(f'v_pk_mul_f32 {v(PV+4*t+2,2)}, {v(PV+4*t+2,2)}, {v(22,2)} op_sel_hi:[1,0]')
            e(f'v_cvt_pk_bf16_f32 v{O+2*t}, v{PV+4*t}, v{PV+4*t+1}')
            e(f'v_cvt_pk_bf16_f32 v{O+2*t+1}, v{PV+4*t+2}, v{PV+4*t+3}')
            if t == 1:
                e(f'''s_mov_b64 exec, s[44:45]
                buffer_store_dwordx4 {v(O,4)}, v{V_PUB}, s[12:15], s31 offen {lsc}
                s_mov_b64 exec, -1''')
        e(f'''
        s_mov_b64 exec, s[44:45]
        buffer_store_dwordx4 {v(O+4,4)}, v{V_PUB}, s[12:15], s31 offen offset:512 {lsc}
        ''')
        self.stamp('SMPV')
        def w3house():
            e(f'''s_mov_b64 exec, s[44:45]
            buffer_store_dwordx2 {v(V_KB,2)}, v{V_KMST}, s[12:15], s35 offen {osc}
            s_mov_b32 exec_lo, -1
            s_mov_b32 exec_hi, 0
            buffer_store_dwordx2 {v(V_VMD,2)}, v{V_VMST}, s[12:15], s35 offen {osc}''')
        e(f'''
        s_mov_b64 exec, -1
        s_cmp_ge_u32 s10, 20
        s_cbranch_scc1 {L('w3nb')}
        s_barrier
        {L('w3nb')}:
        ''')
        e(f'''
        s_cmp_lt_u32 s10, 20
        s_cbranch_scc1 {L('p4go')}
        ''')
        w3house()
        e(f'''
        s_mov_b64 exec, s[44:45]
        buffer_store_dwordx4 {v(V_SENT,4)}, v{V_PUB}, s[12:15], s32 offen {lsc}
        buffer_store_dwordx4 {v(V_SENT,4)}, v{V_PUB}, s[12:15], s32 offen offset:512 {lsc}
        s_mov_b64 exec, -1
        s_branch {L('next')}
        {L('w3last')}:
        ''')
        w3house()
        e(f'''s_mov_b64 exec, -1
        s_branch {L('done')}
        {L('p3done')}:
        s_cmp_ge_u32 s10, 20
        s_cbranch_scc1 {L('nwo')}
        s_barrier
        {L('p4go')}:
        s_add_u32 s40, s31, s48
        ''')
        self.stamp('B3b')
        self.poll3('p4', [(V_RELO,0),(V_RELO,1024),(V_RELO,2048)], 's40', [(V_RELO,L_O),(V_RELO,L_O+1024),(V_RELO,L_O+2048)])
        self.stamp('P4')
        def ofr(ks): return V_FR + 4*ks if ks < 20 else V_K + 4*(ks-20)
        PRE = 4
        for ks in range(PRE):
            e(f'ds_read_b128 {v(ofr(ks),4)}, v{V_LDSB} offset:{L_O+512*ks}')
        for ks in range(24):
            issued = min(24, PRE + ks)
            e(f's_waitcnt lgkmcnt({issued - ks - 1})')
            c0 = '0' if ks == 0 else v(V_Q,4)
            e(f'v_mfma_f32_16x16x32_bf16 {v(V_Q,4)}, {wo_reg(ks)}, {v(ofr(ks),4)}, {c0}')
            if PRE + ks < 24:
                e(f'ds_read_b128 {v(ofr(PRE+ks),4)}, v{V_LDSB} offset:{L_O+512*(PRE+ks)}')
        e(f'''
        s_nop 7
        s_mov_b64 exec, s[44:45]
        buffer_store_dwordx4 {v(V_Q,4)}, v{V_XPUB}, s[12:15], s31 offen sc1
        buffer_store_dwordx4 {v(V_SENT,4)}, v{V_XPUB}, s[12:15], s32 offen sc1
        s_cmp_lg_u32 s9, 3
        s_cbranch_scc1 {L('nw3h')}
        buffer_store_dwordx4 {v(V_SENT,4)}, v{V_PUB}, s[12:15], s32 offen {lsc}
        buffer_store_dwordx4 {v(V_SENT,4)}, v{V_PUB}, s[12:15], s32 offen offset:512 {lsc}
        {L('nw3h')}:
        ''')
        w3house()
        e('s_mov_b64 exec, -1')
        if self.sig:
            self.signal('sgA', 's30')
        self.stamp('Wo')
        e(f'''
        s_cmp_lg_u32 s9, 0
        s_cbranch_scc1 {L('p5done')}
        v_add_u32 v23, 4096, v{V_XPOLL}
        buffer_store_dwordx2 {v(V_SENT,2)}, v{V_MEMPUB}, s[12:15], s32 offen {lsc}
        ''')
        XA = V_FR
        def xissue(Rr):
            for p in range(8):
                va = V_XPOLL if p < 4 else 23
                e(f'buffer_load_dwordx4 {v(Rr+4*p,4)}, v{va}, s[12:15], s31 offen offset:{1024*(p%4)} sc1')
        def xsum(Pp):
            for (x, y) in [(0,1),(2,3),(4,5),(6,7),(0,2),(4,6),(0,4)]:
                e(f'v_pk_add_f32 {v(Pp+4*x,2)}, {v(Pp+4*x,2)}, {v(Pp+4*y,2)}')
                e(f'v_pk_add_f32 {v(Pp+4*x+2,2)}, {v(Pp+4*x+2,2)}, {v(Pp+4*y+2,2)}')
            e(f'''v_cvt_pk_bf16_f32 v20, v{Pp}, v{Pp+1}
            v_cvt_pk_bf16_f32 v21, v{Pp+2}, v{Pp+3}
            v_add_f32 v22, v{Pp}, v{Pp+1}
            v_add_f32 v{Pp+4}, v{Pp+2}, v{Pp+3}
            v_add_f32 v22, v22, v{Pp+4}
            v_cmp_u_f32 vcc, v22, v22''')
        self.delay(self.o('d_x', 150))
        if self.o('trace'): self.stamp('Xiss')
        e(f'{L("p5")}:')
        xissue(XA)
        e('s_waitcnt vmcnt(0)')
        xsum(XA)
        e(f's_cbranch_vccz {L("p5d")}')
        self.fail(L('p5'))
        e(f'''
        {L('p5d')}:
        buffer_store_dwordx2 v[20:21], v{V_MEMPUB}, s[12:15], s33 offen {lsc}
        {L('p5done')}:
        ''')
        self.stamp('X')
        e(f'''s_barrier
        {L('next')}:''')
        if self.o('trace'):
            e(f'''s_cmp_lg_u32 s30, {self.o('trace')}
            s_cbranch_scc1 {L('notr')}
            s_waitcnt lgkmcnt(0)
            s_mul_i32 s40, s8, 24
            s_add_u32 s40, s40, s10
            s_lshl_b32 s40, s40, 2
            s_add_u32 s40, s40, s9
            s_lshl_b32 s40, s40, 7
            s_add_u32 s40, s40, {PROF}
            s_mov_b64 exec, 1''')
            for n in range(len(self.stamps)):
                e(f'v_mov_b32 v20, s{64+2*n}')
                e(f'v_mov_b32 v21, s40')
                e(f'buffer_store_dword v20, v21, s[12:15], 0 offen offset:{4*n}')
                e('s_nop 1')
            e(f'''s_mov_b64 exec, -1
            {L('notr')}:''')
        e(f'''
        s_add_u32 s30, s30, 1
        s_mov_b32 s40, s31
        s_mov_b32 s31, s33
        s_mov_b32 s33, s32
        s_mov_b32 s32, s40
        s_add_u32 s34, s34, {SEGQ}
        s_add_u32 s35, s35, {SEGM}
        s_xor_b32 s51, s51, 4096
        s_branch {L('step')}
        {L('nwo')}:
        ''')
        w3house()
        e('s_mov_b64 exec, -1')
        if self.sig: self.signal('sgB', 's30')
        e(f'''s_branch {L('next')}
        {L('abort')}:
        v_mov_b32 v20, 128
        v_mov_b32 v21, 0xdead
        buffer_store_dword v21, v20, s[20:23], 0 offen
        {L('done')}:
        ''')
        if self.flags:
            e(f'''s_waitcnt vmcnt(0)
            s_barrier
            ''')
            self.signal('sgC', str(NS))
        if self.o('clk'):
            e(f'''s_memtime s[94:95]
            s_memrealtime s[96:97]
            s_waitcnt lgkmcnt(0)
            s_sub_u32 s94, s94, s90
            s_sub_u32 s96, s96, s92
            v_mov_b32 v20, 160
            v_mov_b32 v22, s94
            v_mov_b32 v23, s96
            s_mov_b64 exec, 1
            buffer_store_dwordx2 v[22:23], v20, s[20:23], 0 offen
            s_mov_b64 exec, -1''')
        if self.prof:
            e(f'''
            s_mul_i32 s40, s8, 24
            s_add_u32 s40, s40, s10
            s_lshl_b32 s40, s40, 2
            s_add_u32 s40, s40, s9
            s_lshl_b32 s40, s40, 7
            s_add_u32 s40, s40, {PROF}
            v_mov_b32 v20, s40
            s_mov_b64 exec, 1
            ''')
            for n in range(24):
                src = f's{64+n}' if n < 22 else ('s50' if n == 22 else 's30')
                e(f'v_mov_b32 v{28+n}, {src}')
            for q in range(6):
                e(f'buffer_store_dwordx4 v[{28+4*q}:{31+4*q}], v20, s[12:15], 0 offen offset:{16*q}')
            e('s_mov_b64 exec, -1')
        e('s_waitcnt vmcnt(0)')

def emit_entry(e, P, ngrid=256):
    e(f'''
    s_cmp_ge_u32 s2, {ngrid}
    s_cbranch_scc1 {P}_end
    s_load_dwordx2 s[4:5], s[0:1], 96
    s_load_dwordx2 s[6:7], s[0:1], 104
    s_getreg_b32 s8, hwreg(HW_REG_XCC_ID, 0, 4)
    v_lshrrev_b32 v20, 6, v0
    v_and_b32 v1, 63, v0
    s_nop 0
    v_readfirstlane_b32 s9, v20
    s_waitcnt lgkmcnt(0)
    ''')
    srd(e, 12, 6, 0x10000000)
    srd(e, 20, 4, 256)
    e(f'''
    s_add_u32 s49, s6, 0x1fffff
    s_and_b32 s49, s49, 0xffe00000
    s_sub_u32 s49, s49, s6
    s_cmp_lg_u32 s9, 0
    s_cbranch_scc1 {P}_role1
    s_lshl_b32 s24, s8, 2
    v_mov_b32 v20, s24
    v_mov_b32 v21, 1
    s_mov_b64 exec, 1
    buffer_atomic_add v21, v20, s[20:23], 0 offen sc0
    s_waitcnt vmcnt(0)
    v_mov_b32 v20, 0
    ds_write_b32 v20, v21
    s_waitcnt lgkmcnt(0)
    s_mov_b64 exec, -1
    {P}_role1:
    s_barrier
    v_mov_b32 v20, 0
    ds_read_b32 v21, v20
    s_waitcnt lgkmcnt(0)
    v_readfirstlane_b32 s10, v21
    s_nop 3
    s_barrier
    ''')

if __name__ == '__main__':
    prof = 'prof' in sys.argv
    opt = {}
    for x in sys.argv[2:]:
        if '=' in x:
            k, val = x.split('='); opt[k] = int(val)
    A_ = A()
    A_.L.append('; @launch kernel=chain_kernel grid=(256,1,1) block=(256,1,1) lds=102400')
    A_.L.append('.amdgcn_target "amdgcn-amd-amdhsa--gfx950"')
    kernel_begin(A_, 'chain_kernel')
    emit_entry(A_, 'C')
    A_('''s_cmp_ge_u32 s10, 24
    s_cbranch_scc1 C_end
    s_cmp_ge_u32 s8, 4
    s_cbranch_scc1 C_end''')
    C = Chain(A_, 'C', prof=prof, nsteps=opt.get('nsteps',64), opt=opt)
    if prof:
        for n in range(56, 90): A_(f's_mov_b32 s{n}, 0')
    C.prologue()
    C.main()
    A_('C_end:')
    A_('s_endpgm')
    kernel_desc(A_, 'chain_kernel', 512, accum=256)
    open(sys.argv[1], 'w').write(A_.text())
    open(sys.argv[1] + '.stamps', 'w').write('\n'.join(C.stamps))
```

```python
from asmgen import *
from layout import *

RS = 1344
STG = 45056
def accreg(ct, lo=0, n=16):
    if ct < 16: return a(16*ct+lo, n)
    return v(192 + 16*(ct-16) + lo, n)

def emit_g2f_task(e, L, ldsc='', stsc=''):
    AR = 32
    BR = 64
    DV = 8
    e(f'''
    s_cmp_ge_u32 s31, 8
    s_cbranch_scc1 {L}_wd
    s_load_dwordx2 s[16:17], s[0:1], 40
    s_mov_b32 s18, {6144*1280:#x}
    s_mul_i32 s36, s31, {768*1280}
    s_lshl_b32 s33, s30, 2
    s_add_u32 s33, s33, s9
    s_mul_i32 s34, s33, {SEGQ}
    s_mul_i32 s35, s31, {48*1024}
    s_add_u32 s34, s34, s35
    s_add_u32 s34, s34, {OX}
    s_branch {L}_wj
    {L}_wd:
    s_load_dwordx2 s[16:17], s[0:1], 80
    s_mov_b32 s18, {1536*1280:#x}
    s_sub_u32 s35, s31, 8
    s_mul_i32 s36, s35, {768*1280}
    s_lshl_b32 s33, s30, 2
    s_add_u32 s33, s33, s9
    s_mul_i32 s34, s33, {96*1024}
    s_mul_i32 s35, s35, {48*1024}
    s_add_u32 s34, s34, s35
    s_add_u32 s34, s34, {HB}
    {L}_wj:
    s_waitcnt lgkmcnt(0)
    s_and_b32 s17, s17, 0xffff
    s_mov_b32 s19, 0x00020000
    ''')
    for n in range(11):
        e(f'''s_mul_i32 s32, s9, 704
        s_add_u32 s32, s32, {64*n}
        v_add_u32 v2, s32, v1
        v_mul_u32_u24 v3, 3121, v2
        v_lshrrev_b32 v3, 18, v3          ; /84
        v_mul_u32_u24 v4, 84, v3
        v_sub_u32 v4, v2, v4
        v_min_u32 v4, 79, v4
        v_min_u32 v3, 31, v3
        v_mul_u32_u24 v3, 1280, v3
        v_lshl_add_u32 v{DV+n}, v4, 4, v3''')
    e(f'''
    v_lshrrev_b32 v2, 5, v1
    v_and_b32 v3, 15, v1
    v_lshrrev_b32 v3, 2, v3
    v_lshl_add_u32 v3, v2, 2, v3
    v_mul_u32_u24 v5, {RS}, v3
    v_bfe_u32 v3, v1, 4, 1
    v_lshl_add_u32 v5, v3, 5, v5
    v_and_b32 v3, 3, v1
    v_lshl_add_u32 v5, v3, 3, v5
    v_and_b32 v3, 31, v1
    v_lshlrev_b32 v4, 5, v3
    v_lshl_add_u32 v4, v2, 4, v4
    s_mul_i32 s37, s9, {11*1024}
    s_mov_b32 s38, 0
    s_mov_b32 s39, {STG}
    s_mov_b32 s40, {2*STG}
    s_mov_b32 s42, s34
    ''')
    def dma_list(buf):
        return [f's_add_u32 s41, {buf}, s37\ns_add_u32 s41, s41, {1024*n}\ns_mov_b32 m0, s41\ns_nop 0\nbuffer_load_dwordx4 v{DV+n}, s[16:19], s36 offen lds' for n in range(11)]
    def bload(slot):
        e(f'buffer_load_dwordx4 {v(BR+4*slot,4)}, v4, s[12:15], s42 offen {ldsc}')
        e('s_add_u32 s42, s42, 1024')
    seq = []
    for g in dma_list('s38'): e(g)
    seq += ['D0']*11
    e(f's_add_u32 s36, s36, {32*1280}')
    for g in dma_list('s39'): e(g)
    seq += ['D1']*11
    e(f's_add_u32 s36, s36, {32*1280}')
    for k in range(4): bload(k); seq.append(('B', k))
    def after(tag):
        i = max(j for j, x in enumerate(seq) if x == tag); return len(seq) - i - 1
    e(f's_waitcnt vmcnt({after("D0")})')
    e('s_barrier')
    e('v_add_u32 v6, s38, v5')
    def rdA(f):
        base = 'v6' if f < 40 else 'v7'
        ff = f % 40; k2, ct = ff // 20, ff % 20
        for hf in range(2):
            e(f'ds_read_b64_tr_b16 {v(AR+4*(f%8)+2*hf,2)}, {base} offset:{(16*k2+8*hf)*RS + ct*64}')
    PRE = 4
    for f in range(PRE): rdA(f)
    def stage(st, zero_first, sim):
        D = dma_list('s40'); di = 0
        for k2 in range(2):
            gk = 2*st + k2
            if k2 == 1:
                w = after(f'D{st+1}') if sim else 2
                e(f's_waitcnt vmcnt({w})')
                e('s_barrier')
                e('v_add_u32 v7, s39, v5')
            w = after(('B', gk)) if sim else (25 if k2 == 0 else 14)
            if k2 == 0 or True: e(f's_waitcnt vmcnt({w})')
            for ct in range(20):
                f = 20*k2 + ct
                e(f's_waitcnt lgkmcnt({2*(PRE-1)})')
                c = '0' if (zero_first and k2 == 0) else accreg(ct)
                e(f'v_mfma_f32_32x32x16_bf16 {accreg(ct)}, {v(AR+4*(f%8),4)}, {v(BR+4*(gk%4),4)}, {c}')
                rdA(f+PRE)
                if k2 == 1 and ct % 2 == 0 and di < 11:
                    e(D[di]); di += 1
                    if sim: seq.append(f'D{st+2}')
                if k2 == 1 and ct == 19:
                    e(D[di]); di += 1
                    if sim: seq.append(f'D{st+2}')
            bload(gk % 4)
            if sim: seq.append(('B', gk+4))
        assert di == 11
        e(f'''s_add_u32 s36, s36, {32*1280}
        s_mov_b32 s41, s38
        s_mov_b32 s38, s39
        s_mov_b32 s39, s40
        s_mov_b32 s40, s41
        v_mov_b32 v6, v7''')
    stage(0, True, True)
    stage(1, False, True)
    chk = list(seq)
    e('s_mov_b32 s43, 2')
    e(f'{L}_loop:')
    stage(0, False, False)
    stage(1, False, False)
    e(f'''s_add_u32 s43, s43, 2
    s_cmp_lt_u32 s43, 24
    s_cbranch_scc1 {L}_loop''')
    e(f'''
    s_mul_i32 s32, s30, 10
    s_add_u32 s32, s32, s31
    s_lshl_b32 s32, s32, 2
    s_add_u32 s32, s32, s9
    s_mul_i32 s32, s32, 81920
    s_add_u32 s32, s32, {PART}
    v_lshlrev_b32 v2, 4, v1
    s_waitcnt lgkmcnt(0)
    s_nop 15
    ''')
    for ct in range(20):
        for q in range(4):
            e(f'buffer_store_dwordx4 {accreg(ct,4*q,4)}, v2, s[12:15], s32 offen offset:{1024*q} {stsc}')
        e('s_add_u32 s32, s32, 4096')

def emit_red_task(e, L, ldsc=''):
    e(f'''
    s_load_dwordx2 s[16:17], s[0:1], 0
    s_load_dwordx2 s[24:25], s[0:1], 88
    s_waitcnt lgkmcnt(0)
    s_and_b32 s17, s17, 0xffff
    s_mov_b32 s18, {2048*1280:#x}
    s_mov_b32 s19, 0x00020000
    s_and_b32 s25, s25, 0xffff
    s_mov_b32 s26, {2048*1280:#x}
    s_mov_b32 s27, 0x00020000
    v_lshlrev_b32 v2, 4, v1
    v_and_b32 v3, 31, v1
    v_lshrrev_b32 v4, 5, v1
    v_mul_u32_u24 v5, 1280, v3
    v_lshl_add_u32 v5, v4, 3, v5          ; token*1280 + g2*8
    s_lshr_b32 s32, s30, 2                ; rb
    s_and_b32 s33, s30, 3
    s_mul_i32 s32, s32, 40
    s_add_u32 s32, s32, s33
    s_mul_i32 s32, s32, 81920
    s_mul_i32 s33, s9, 20480
    s_add_u32 s32, s32, s33
    s_add_u32 s32, s32, {PART}
    s_mul_i32 s34, s30, {32*1280}
    s_mul_i32 s33, s9, 320
    s_add_u32 s34, s34, s33
    ''')
    R = [16, 192+16-16]
    P = 16; X = 176
    for c in range(5):
        e('s_mov_b32 s35, s32')
        for kq in range(10):
            for q in range(4):
                e(f'buffer_load_dwordx4 {v(P+16*kq+4*q,4)}, v2, s[12:15], s35 offen offset:{1024*q} {ldsc}')
            e(f's_add_u32 s35, s35, {4*81920}')
        for q in range(4):
            e(f'buffer_load_dwordx2 {v(X+2*q,2)}, v5, s[16:19], s34 offen offset:{64*c+16*q}')
        e('s_waitcnt vmcnt(0)')
        for q in range(4):
            b = P + 4*q
            for h in range(2):
                r = b + 2*h
                for (x, y) in [(0,1),(2,3),(4,5),(6,7),(0,2),(4,6),(0,4),(8,9)]:
                    e(f'v_pk_add_f32 {v(r+16*x,2)}, {v(r+16*x,2)}, {v(r+16*y,2)}')
                xr = X + 2*q + h
                e(f'''v_cvt_pk_bf16_f32 v6, v{r}, v{r+1}
                v_cvt_pk_bf16_f32 v7, v{r+128}, v{r+129}
                v_lshlrev_b32 v8, 16, v6
                v_and_b32 v6, 0xffff0000, v6
                v_lshlrev_b32 v9, 16, v{xr}
                v_and_b32 v10, 0xffff0000, v{xr}
                v_add_f32 v8, v8, v9
                v_add_f32 v6, v6, v10
                v_cvt_pk_bf16_f32 v6, v8, v6
                v_lshlrev_b32 v8, 16, v6
                v_and_b32 v6, 0xffff0000, v6
                v_lshlrev_b32 v9, 16, v7
                v_and_b32 v10, 0xffff0000, v7
                v_add_f32 v8, v8, v9
                v_add_f32 v6, v6, v10
                v_cvt_pk_bf16_f32 v{xr}, v8, v6''')
            e(f'buffer_store_dwordx2 {v(X+2*q,2)}, v5, s[24:27], s34 offen offset:{64*c+16*q}')
        e('s_add_u32 s32, s32, 4096')

def entry(e, L, n):
    e(f'''
    s_cmp_ge_u32 s2, {n}
    s_cbranch_scc1 {L}_end
    s_load_dwordx2 s[6:7], s[0:1], 104
    v_lshrrev_b32 v20, 6, v0
    v_and_b32 v1, 63, v0
    s_nop 0
    v_readfirstlane_b32 s9, v20
    s_waitcnt lgkmcnt(0)
    ''')
    srd(e, 12, 6, 0x10000000)

def emit_g2f(e, L):
    entry(e, L, 160)
    e('''s_mul_i32 s30, s2, 6554
    s_lshr_b32 s30, s30, 16
    s_mul_i32 s31, s30, 10
    s_sub_u32 s31, s2, s31''')
    emit_g2f_task(e, L)
    e('s_waitcnt vmcnt(0)')
    e(f'{L}_end:'); e('s_endpgm')
def emit_red(e, L):
    entry(e, L, 64)
    e('s_mov_b32 s30, s2')
    emit_red_task(e, L)
    e('s_waitcnt vmcnt(0)')
    e(f'{L}_end:'); e('s_endpgm')
```

```python
from asmgen import *
from layout import *
import struct
def f2u(x): return struct.unpack('<I', struct.pack('<f', x))[0]

def emit_ln(e, name):
    L = name
    e(f'''
    s_cmp_ge_u32 s2, 256
    s_cbranch_scc1 {L}_end
    s_load_dwordx2 s[4:5], s[0:1], 0
    s_load_dwordx2 s[6:7], s[0:1], 104
    v_lshrrev_b32 v20, 6, v0
    v_and_b32 v1, 63, v0
    s_nop 0
    v_readfirstlane_b32 s9, v20
    s_waitcnt lgkmcnt(0)
    ''')
    srd(e, 12, 6, 0x10000000)
    e(f'''
    s_cmp_ge_u32 s2, 64
    s_cbranch_scc1 {L}_init
    ''')
    srd(e, 8+8, 4, 2048*1280)
    e(f'''
    v_and_b32 v2, 31, v1
    v_lshrrev_b32 v3, 5, v1
    v_mul_u32_u24 v4, 1280, v2
    v_lshl_add_u32 v4, v3, 4, v4
    s_mul_i32 s20, s2, {32*1280}
    s_mul_i32 s21, s9, 320
    s_add_u32 s20, s20, s21
    ''')
    for k in range(10):
        e(f'buffer_load_dwordx4 {v(24+4*k,4)}, v4, s[16:19], s20 offen offset:{32*k}')
    e('s_waitcnt vmcnt(0)')
    for k in range(40):
        e(f'v_lshlrev_b32 v{64+2*k}, 16, v{24+k}')
        e(f'v_and_b32 v{65+2*k}, 0xffff0000, v{24+k}')
    def reduce_rows(acc, ldsoff):
        e(f'''
        v_mov_b32 v9, v{acc}
        s_nop 1
        v_permlane32_swap_b32 v{acc}, v9
        v_add_f32 v{acc}, v{acc}, v9
        v_lshlrev_b32 v10, 2, v2
        s_lshl_b32 s22, s9, 7
        v_add_u32 v10, s22, v10
        ds_write_b32 v10, v{acc} offset:{ldsoff}
        s_waitcnt lgkmcnt(0)
        s_barrier
        v_lshlrev_b32 v10, 2, v2
        ds_read_b32 v8, v10 offset:{ldsoff}
        ds_read_b32 v11, v10 offset:{ldsoff+128}
        ds_read_b32 v12, v10 offset:{ldsoff+256}
        ds_read_b32 v13, v10 offset:{ldsoff+384}
        s_waitcnt lgkmcnt(0)
        v_add_f32 v8, v8, v11
        v_add_f32 v12, v12, v13
        v_add_f32 v8, v8, v12
        ''')
    e('v_mov_b32 v5, 0'); e('v_mov_b32 v6, 0'); e('v_mov_b32 v7, 0'); e('v_mov_b32 v14, 0')
    for k in range(20):
        e(f'v_add_f32 v5, v5, v{64+4*k}'); e(f'v_add_f32 v6, v6, v{65+4*k}')
        e(f'v_add_f32 v7, v7, v{66+4*k}'); e(f'v_add_f32 v14, v14, v{67+4*k}')
    e('v_add_f32 v5, v5, v6'); e('v_add_f32 v7, v7, v14'); e('v_add_f32 v5, v5, v7')
    reduce_rows(5, 0)
    e(f'v_mul_f32 v15, {f2u(1.0/640):#x}, v8')
    e('v_mov_b32 v5, 0'); e('v_mov_b32 v6, 0'); e('v_mov_b32 v7, 0'); e('v_mov_b32 v14, 0')
    accs = [5,6,7,14]
    for k in range(80):
        e(f'v_sub_f32 v16, v{64+k}, v15')
        e(f'v_fmac_f32 v{accs[k%4]}, v16, v16')
    e('v_add_f32 v5, v5, v6'); e('v_add_f32 v7, v7, v14'); e('v_add_f32 v5, v5, v7')
    reduce_rows(5, 512)
    e(f'''
    v_mul_f32 v8, {f2u(1.0/640):#x}, v8
    v_cvt_pk_bf16_f32 v8, v8, v8
    v_lshlrev_b32 v8, 16, v8
    v_add_f32 v8, {f2u(1e-5):#x}, v8
    v_cvt_pk_bf16_f32 v8, v8, v8
    v_lshlrev_b32 v8, 16, v8
    v_sqrt_f32 v8, v8
    s_nop 0
    v_cvt_pk_bf16_f32 v8, v8, v8
    v_lshlrev_b32 v8, 16, v8
    v_rcp_f32 v9, v8
    v_cvt_pk_bf16_f32 v15, v15, v15
    v_lshlrev_b32 v15, 16, v15
    ''')
    for k in range(40):
        a0, a1 = 64+2*k, 65+2*k
        e(f'''v_sub_f32 v{a0}, v{a0}, v15
        v_sub_f32 v{a1}, v{a1}, v15
        v_cvt_pk_bf16_f32 v16, v{a0}, v{a1}
        v_lshlrev_b32 v{a0}, 16, v16
        v_and_b32 v{a1}, 0xffff0000, v16
        v_mul_f32 v16, v{a0}, v9
        v_mul_f32 v17, v{a1}, v9
        v_fma_f32 v18, -v16, v8, v{a0}
        v_fma_f32 v19, -v17, v8, v{a1}
        v_fmac_f32 v16, v18, v9
        v_fmac_f32 v17, v19, v9
        v_cvt_pk_bf16_f32 v{24+k}, v16, v17''')
    e(f'''
    v_lshlrev_b32 v4, 4, v1
    s_mul_i32 s20, s2, 40960
    s_mul_i32 s21, s9, 10240
    s_add_u32 s20, s20, s21
    s_add_u32 s20, s20, {XN}
    ''')
    for k in range(10):
        if k*1024 < 4096:
            e(f'buffer_store_dwordx4 {v(24+4*k,4)}, v4, s[12:15], s20 offen offset:{1024*k}')
        else:
            if k % 4 == 0: e('s_add_u32 s20, s20, 4096')
            e(f'buffer_store_dwordx4 {v(24+4*k,4)}, v4, s[12:15], s20 offen offset:{1024*(k%4)}')
    e(f's_branch {L}_fin')
    e(f'''
    {L}_init:
    s_add_u32 s24, s6, 0x1fffff
    s_and_b32 s24, s24, 0xffe00000
    s_sub_u32 s24, s24, s6
    s_cmp_lg_u32 s2, 64
    s_cbranch_scc1 {L}_noctl
    v_lshlrev_b32 v4, 4, v0
    v_mov_b32 v24, 0
    v_mov_b32 v25, 0
    v_mov_b32 v26, 0
    v_mov_b32 v27, 0
    s_add_u32 s20, s24, {CTL}
    ''' + ''.join(f'''buffer_store_dwordx4 v[24:27], v4, s[12:15], s20 offen
    s_add_u32 s20, s20, 4096
    ''' for _ in range(CTL_BYTES//4096)) + f'''
    {L}_noctl:
    s_sub_u32 s20, s2, 64
    s_mul_i32 s20, s20, 10240
    s_add_u32 s20, s20, s24
    v_lshlrev_b32 v4, 4, v0
    v_mov_b32 v24, -1
    v_mov_b32 v25, -1
    v_mov_b32 v26, -1
    v_mov_b32 v27, -1
    buffer_store_dwordx4 v[24:27], v4, s[12:15], s20 offen
    s_add_u32 s20, s20, 4096
    buffer_store_dwordx4 v[24:27], v4, s[12:15], s20 offen
    s_add_u32 s20, s20, 4096
    v_cmp_gt_u32 vcc, 128, v0
    s_and_saveexec_b64 s[22:23], vcc
    s_cbranch_execz {L}_fin
    buffer_store_dwordx4 v[24:27], v4, s[12:15], s20 offen
    {L}_fin:
    s_waitcnt vmcnt(0)
    {L}_end:
    s_endpgm
    ''')
```

```python
from asmgen import *
from layout import *
from k_attn import emit_attn_task
from k_g2f import emit_g2f_task

L_TASK = 135168
LDS_MEGA = 135168 + 256
NR = 58
NROUND = 18
C_ATT = C_CNT
C_G2 = C_CNT + 0x200

def emit_red_unit_task(e, L, ldsc='sc1'):
    e(f'''
    s_load_dwordx2 s[16:17], s[0:1], 0
    s_load_dwordx2 s[24:25], s[0:1], 88
    s_waitcnt lgkmcnt(0)
    s_and_b32 s17, s17, 0xffff
    s_mov_b32 s18, {2048*1280:#x}
    s_mov_b32 s19, 0x00020000
    s_and_b32 s25, s25, 0xffff
    s_mov_b32 s26, {2048*1280:#x}
    s_mov_b32 s27, 0x00020000
    v_lshlrev_b32 v2, 4, v1
    v_and_b32 v3, 31, v1
    v_lshrrev_b32 v4, 5, v1
    v_mul_u32_u24 v5, 1280, v3
    v_lshl_add_u32 v5, v4, 3, v5          ; token*1280 + g2*8
    s_lshr_b32 s32, s30, 2                ; rb
    s_and_b32 s33, s30, 3
    s_mul_i32 s32, s32, 40
    s_add_u32 s32, s32, s33
    s_mul_i32 s32, s32, 81920
    s_mul_i32 s33, s31, 20480
    s_add_u32 s32, s32, s33
    s_lshl_b32 s33, s9, 10
    s_add_u32 s32, s32, s33
    s_add_u32 s32, s32, {PART}
    s_mul_i32 s34, s30, {32*1280}
    s_mul_i32 s33, s31, 320
    s_add_u32 s34, s34, s33
    s_lshl_b32 s33, s9, 4
    s_add_u32 s34, s34, s33
    ''')
    P = 16; X = 216
    for c in range(5):
        e(f'buffer_load_dwordx2 {v(X+2*c,2)}, v5, s[16:19], s34 offen offset:{64*c}')
    for kq in range(10):
        e(f's_add_u32 s35, s32, {kq*4*81920}')
        for c in range(4):
            e(f'buffer_load_dwordx4 {v(P+40*c+4*kq,4)}, v2, s[12:15], s35 offen offset:0 {ldsc}')
            e(f's_add_u32 s35, s35, 4096')
        e(f'buffer_load_dwordx4 {v(P+40*4+4*kq,4)}, v2, s[12:15], s35 offen offset:0 {ldsc}')
    e('s_waitcnt vmcnt(0)')
    for c in range(5):
        b = P + 40*c
        for h in range(2):
            r = b + 2*h
            for (x, y) in [(0,1),(2,3),(4,5),(6,7),(0,2),(4,6),(0,4),(8,9)]:
                e(f'v_pk_add_f32 {v(r+4*x,2)}, {v(r+4*x,2)}, {v(r+4*y,2)}')
            xr = X + 2*c + h
            e(f'''v_cvt_pk_bf16_f32 v6, v{r}, v{r+1}
            v_cvt_pk_bf16_f32 v7, v{r+32}, v{r+33}
            v_lshlrev_b32 v8, 16, v6
            v_and_b32 v6, 0xffff0000, v6
            v_lshlrev_b32 v9, 16, v{xr}
            v_and_b32 v10, 0xffff0000, v{xr}
            v_add_f32 v8, v8, v9
            v_add_f32 v6, v6, v10
            v_cvt_pk_bf16_f32 v6, v8, v6
            v_lshlrev_b32 v8, 16, v6
            v_and_b32 v6, 0xffff0000, v6
            v_lshlrev_b32 v9, 16, v7
            v_and_b32 v10, 0xffff0000, v7
            v_add_f32 v8, v8, v9
            v_add_f32 v6, v6, v10
            v_cvt_pk_bf16_f32 v{xr}, v8, v6''')
        e(f'buffer_store_dwordx2 {v(X+2*c,2)}, v5, s[24:27], s34 offen offset:{64*c}')

def emit_post(e, P='PO', abort='M_end'):
    def Lb(n): return f'{P}_{n}'
    def wait_vec(tag, setup, need):
        e(f'''s_cmp_lg_u32 s9, 0
        s_cbranch_scc1 {Lb(tag+'b')}''')
        setup()
        e(f'''s_mov_b32 s61, 0
        {Lb(tag)}:
        buffer_load_dword v21, v20, s[12:15], 0 offen sc1
        s_waitcnt vmcnt(0)
        v_cmp_gt_u32 vcc, {need}, v21
        s_cbranch_vccz {Lb(tag+'b')}
        s_sleep 16
        s_add_u32 s61, s61, 1
        s_cmp_lt_u32 s61, 0x100000
        s_cbranch_scc1 {Lb(tag)}
        v_mov_b32 v20, 132
        v_mov_b32 v21, 0xbad
        s_mov_b64 exec, 1
        buffer_store_dword v21, v20, s[20:23], 0 offen
        s_mov_b64 exec, -1
        {Lb(tag+'b')}:
        s_barrier''')
    def signal(addr_expr_setup):
        e(f'''s_waitcnt vmcnt(0)
        s_barrier
        s_cmp_lg_u32 s9, 0
        s_cbranch_scc1 {Lb('loop')}''')
        addr_expr_setup()
        e(f'''v_mov_b32 v20, s40
        v_mov_b32 v21, 1
        s_mov_b64 exec, 1
        buffer_atomic_add v21, v20, s[12:15], 0 offen
        s_mov_b64 exec, -1
        s_branch {Lb('loop')}''')
    e(f'''
    {Lb('loop')}:
    s_cmp_lg_u32 s9, 0
    s_cbranch_scc1 {Lb('got')}
    s_add_u32 s40, s62, {CTL + C_TASK}
    v_mov_b32 v20, s40
    v_mov_b32 v21, 1
    s_mov_b64 exec, 1
    buffer_atomic_add v21, v20, s[12:15], 0 offen sc0
    s_waitcnt vmcnt(0)
    v_mov_b32 v20, {L_TASK}
    ds_write_b32 v20, v21
    s_waitcnt lgkmcnt(0)
    s_mov_b64 exec, -1
    {Lb('got')}:
    s_barrier
    v_mov_b32 v20, {L_TASK}
    ds_read_b32 v21, v20
    s_waitcnt lgkmcnt(0)
    v_readfirstlane_b32 s60, v21
    s_nop 3
    s_barrier
    s_cmp_ge_u32 s60, {NR*NROUND}
    s_cbranch_scc1 {Lb('exit')}
    s_mul_i32 s58, s60, 1130
    s_lshr_b32 s58, s58, 16           ; r = t/58
    s_mul_i32 s59, s58, {NR}
    s_sub_u32 s59, s60, s59           ; k
    s_cmp_ge_u32 s59, 42
    s_cbranch_scc1 {Lb('red')}
    s_cmp_ge_u32 s58, 16
    s_cbranch_scc1 {Lb('loop')}
    s_cmp_ge_u32 s59, 32
    s_cbranch_scc1 {Lb('g2')}
    s_lshl_b32 s30, s58, 2
    s_lshr_b32 s40, s59, 3
    s_add_u32 s30, s30, s40
    s_and_b32 s57, s59, 7
    s_add_u32 s56, s30, 1
    ''')
    def att_setup():
        e(f'''v_mul_u32_u24 v22, 43, v1
        v_lshrrev_b32 v22, 9, v22              ; lane/12
        v_mul_u32_u24 v23, 12, v22
        v_sub_u32 v23, v1, v23                 ; lane%12
        s_mul_i32 s40, s57, 12
        v_add_u32 v24, s40, v23
        v_mul_u32_u24 v25, 96, v22
        v_add_u32 v24, v24, v25
        v_lshlrev_b32 v24, 2, v24
        s_add_u32 s41, s62, {CTL + C_FG1}
        v_add_u32 v24, s41, v24
        s_lshr_b32 s40, s57, 1
        s_mul_i32 s40, s40, 24
        s_and_b32 s41, s57, 1
        s_mul_i32 s41, s41, 12
        s_add_u32 s40, s40, s41
        v_add_u32 v25, s40, v23
        v_lshlrev_b32 v25, 7, v25
        s_add_u32 s41, s62, {CTL + C_FCH}
        v_add_u32 v25, s41, v25
        v_cmp_lt_u32 vcc, 2, v22               ; lane >= 36
        s_nop 1
        v_cndmask_b32 v20, v24, v25, vcc
        ''')
    wait_vec('wa', att_setup, 's56')
    e(f'''s_lshl_b32 s31, s57, 2
    s_add_u32 s31, s31, s9''')
    emit_attn_task(e, sc='sc1', ldsc='sc1')
    def att_sig():
        e(f'''s_lshr_b32 s40, s30, 2
        s_lshl_b32 s40, s40, 3
        s_add_u32 s40, s40, s57
        s_lshl_b32 s40, s40, 2
        s_add_u32 s40, s40, s62
        s_add_u32 s40, s40, {CTL + C_ATT}''')
    signal(att_sig)
    e(f'''
    {Lb('g2')}:
    s_mov_b32 s30, s58
    s_sub_u32 s31, s59, 34
    s_cmp_lt_u32 s59, 34
    s_cbranch_scc0 {Lb('g2a')}
    s_sub_u32 s31, s59, 24               ; 32,33 -> 8,9
    s_lshl_b32 s56, s58, 2
    s_add_u32 s56, s56, 4
    ''')
    def gu_setup():
        e(f'''v_mul_u32_u24 v22, 43, v1
        v_lshrrev_b32 v22, 10, v22             ; lane/24
        v_mul_u32_u24 v22, 24, v22
        v_sub_u32 v22, v1, v22
        s_sub_u32 s40, s31, 8
        s_mul_i32 s40, s40, 24
        s_add_u32 s40, s40, 288
        v_add_u32 v22, s40, v22
        v_lshlrev_b32 v22, 2, v22
        s_add_u32 s41, s62, {CTL + C_FG1}
        v_add_u32 v20, s41, v22''')
    wait_vec('wg', gu_setup, 's56')
    e(f's_branch {Lb("g2go")}')
    e(f'{Lb("g2a")}:')
    e('s_mov_b32 s56, 4')
    def at_setup():
        e(f'''s_lshl_b32 s40, s30, 3
        s_add_u32 s40, s40, s31
        s_lshl_b32 s40, s40, 2
        s_add_u32 s40, s40, s62
        s_add_u32 s40, s40, {CTL + C_ATT}
        v_mov_b32 v20, s40''')
    wait_vec('wo', at_setup, 's56')
    e(f'{Lb("g2go")}:')
    e('s_mov_b32 s57, s30')
    emit_g2f_task(e, P+'G', ldsc='sc1', stsc='sc1')
    def g2_sig():
        e(f'''s_lshl_b32 s40, s57, 2
        s_add_u32 s40, s40, s62
        s_add_u32 s40, s40, {CTL + C_G2}''')
    signal(g2_sig)
    e(f'''
    {Lb('red')}:
    s_cmp_lt_u32 s58, 2
    s_cbranch_scc1 {Lb('loop')}
    s_sub_u32 s57, s58, 2                 ; rb
    s_sub_u32 s59, s59, 42
    s_lshr_b32 s40, s59, 2
    s_lshl_b32 s30, s57, 2
    s_add_u32 s30, s30, s40
    s_and_b32 s31, s59, 3
    s_mov_b32 s56, 10
    ''')
    def rd_setup():
        e(f'''s_lshl_b32 s40, s57, 2
        s_add_u32 s40, s40, s62
        s_add_u32 s40, s40, {CTL + C_G2}
        v_mov_b32 v20, s40''')
    wait_vec('wr', rd_setup, 's56')
    emit_red_unit_task(e, P+'R')
    e(f'''s_waitcnt vmcnt(0)
    s_branch {Lb('loop')}
    {Lb('exit')}:''')
```

```python
MB = 1 << 20
SLOT = 0xA0000
X_OFF = 0
MEM_OFF = 0x50000
H1_OFF = 0x5A000
O_OFF = 0x7E000
RING_BYTES = 3 * SLOT
CAL_OFF = 0x1E0000
CTL = 0x1E8000
CTL_BYTES = 0x8000
C_HSEL = 0
C_FG1 = 0x400
C_FCH = 0x1000
C_TASK = 0x4000
C_CNT = 0x4100
KX = 4 * MB
VX = 28 * MB
QX = 52 * MB
HB = 76 * MB
XN = 82 * MB
KM = 85 * MB
VM = 92 * MB
OX = 99 * MB
PART = 124 * MB
SEGQ = 32 * 12 * 1024
SEGM = 32 * 12 * 256
PROF = 200 * MB
```

```python
import sys
from asmgen import *
from layout import *
from k_ln import emit_ln
import k_gemm1
from k_gemm1 import emit_gemm1_body
from k_attn import emit_attn
from k_gemm2 import emit_gemm2
from k_g2f import emit_g2f, emit_red
import chain3
from chain3 import Chain, emit_entry

def g1_role(e, L):
    e(f'''
    s_sub_u32 s11, s8, 4
    s_mul_i32 s11, s11, 21
    s_add_u32 s11, s11, s10
    s_lshl_b32 s60, s11, 2
    s_add_u32 s60, s60, s9
    s_lshl_b32 s60, s60, 2
    s_add_u32 s60, s60, s49
    s_add_u32 s60, s60, {CTL + C_FG1}
    v_mov_b32 v8, s60
    ''')
    def sig(e, kind):
        e('''s_max_u32 s61, s30, 1
        s_sub_u32 s61, s61, 1
        v_mov_b32 v9, s61
        s_mov_b64 exec, 1
        buffer_store_dword v9, v8, s[12:15], 0 offen sc1
        s_mov_b64 exec, -1''')
    def fin(e):
        e('''s_waitcnt vmcnt(0)
        v_mov_b32 v9, 64
        s_mov_b64 exec, 1
        buffer_store_dword v9, v8, s[12:15], 0 offen sc1
        s_mov_b64 exec, -1''')
    emit_gemm1_body(e, L, 1, 'sc1', sig_hook=sig, fin_hook=fin)

def build(path, opt):
    HDR = open('parallel_sum__memory_aug_recurrent_mem_tr__geglu_ffn__prompt.s.ref').read().split('\n')
    A_ = A()
    for l in HDR:
        if l.startswith(';') and '@launch' not in l and 'Override launch' not in l and 'grid=ceil' not in l: A_.L.append(l)
        if not l.startswith(';'): break
    A_.L.append('; @launch kernel=ln_kernel grid=(256,1,1) block=(256,1,1) lds=1024')
    A_.L.append('; @launch kernel=mega_kernel grid=(256,1,1) block=(256,1,1) lds=122880')
    A_.L.append('; @launch kernel=attn_kernel grid=(512,1,1) block=(256,1,1) lds=0')
    A_.L.append('; @launch kernel=g2f_kernel grid=(160,1,1) block=(256,1,1) lds=135168')
    A_.L.append('; @launch kernel=red_kernel grid=(64,1,1) block=(256,1,1) lds=0')
    A_.L.append('.amdgcn_target "amdgcn-amd-amdhsa--gfx950"')
    kernel_begin(A_, 'ln_kernel'); emit_ln(A_, 'LN')
    kernel_begin(A_, 'mega_kernel')
    e = A_
    emit_entry(e, 'M')
    e('''
    s_cmp_ge_u32 s8, 4
    s_cbranch_scc1 M_hi
    s_cmp_ge_u32 s10, 24
    s_cbranch_scc1 M_end
    ''')
    C = Chain(e, 'C', opt=opt, flags=True, prof=bool(opt.get('prof')))
    if opt.get('prof'):
        for n in range(56, 90): e(f's_mov_b32 s{n}, 0')
    C.prologue(); C.main()
    e('s_branch M_end')
    e('''M_hi:
    s_cmp_ge_u32 s10, 21
    s_cbranch_scc1 M_end''')
    g1_role(e, 'G1')
    e('M_end:'); e('s_endpgm')
    kernel_begin(A_, 'attn_kernel'); emit_attn(A_, 'AT')
    kernel_begin(A_, 'g2f_kernel'); emit_g2f(A_, 'G2')
    kernel_begin(A_, 'red_kernel'); emit_red(A_, 'RD')
    kernel_desc(A_, 'ln_kernel', 144)
    kernel_desc(A_, 'mega_kernel', 512, accum=256)
    kernel_desc(A_, 'attn_kernel', 256)
    kernel_desc(A_, 'g2f_kernel', 512, accum=256)
    kernel_desc(A_, 'red_kernel', 256)
    open(path, 'w').write(A_.text())
    open(path + '.stamps', 'w').write('\n'.join(C.stamps))

if __name__ == '__main__':
    opt = {}
    for x in sys.argv[2:]:
        if '=' in x:
            k, val = x.split('='); opt[k] = int(val)
    build(sys.argv[1], opt)
```

```python
import sys
from asmgen import *
from layout import *
from k_ln import emit_ln
from mega import g1_role
from k_post import emit_post, LDS_MEGA
import chain3
from chain3 import Chain, emit_entry

def build(path, opt):
    HDR = open('parallel_sum__memory_aug_recurrent_mem_tr__geglu_ffn__prompt.s.ref').read().split('\n')
    A_ = A()
    for l in HDR:
        if l.startswith(';') and '@launch' not in l and 'Override launch' not in l and 'grid=ceil' not in l: A_.L.append(l)
        if not l.startswith(';'): break
    A_.L.append('; @launch kernel=ln_kernel grid=(256,1,1) block=(256,1,1) lds=1024')
    A_.L.append(f'; @launch kernel=mega_kernel grid=(256,1,1) block=(256,1,1) lds={LDS_MEGA}')
    A_.L.append('.amdgcn_target "amdgcn-amd-amdhsa--gfx950"')
    kernel_begin(A_, 'ln_kernel'); emit_ln(A_, 'LN')
    kernel_begin(A_, 'mega_kernel')
    e = A_
    emit_entry(e, 'M')
    e('s_mov_b32 s62, s49')
    e('''
    s_cmp_ge_u32 s8, 4
    s_cbranch_scc1 M_hi
    s_cmp_ge_u32 s10, 24
    ''')
    e('s_cbranch_scc1 M_post' if opt.get('spare', 0) else 's_cbranch_scc1 M_end')
    C = Chain(e, 'C', opt=opt, flags=True, prof=bool(opt.get('prof')))
    if opt.get('prof'):
        for n in range(56, 90): e(f's_mov_b32 s{n}, 0')
    C.prologue(); C.main()
    e('s_branch M_post')
    e('''M_hi:
    s_cmp_ge_u32 s10, 21
    s_cbranch_scc1 M_post''')
    g1_role(e, 'G1')
    e('M_post:')
    e('s_waitcnt vmcnt(0) lgkmcnt(0)')
    e('s_barrier')
    srd(e, 20, 4, 256)
    emit_post(e)
    e('M_end:'); e('s_endpgm')
    kernel_desc(A_, 'ln_kernel', 144)
    kernel_desc(A_, 'mega_kernel', 512, accum=256)
    open(path, 'w').write(A_.text())
    open(path + '.stamps', 'w').write('\n'.join(C.stamps))

if __name__ == '__main__':
    opt = {}
    for x in sys.argv[2:]:
        if '=' in x:
            k, val = x.split('='); opt[k] = int(val)
    build(sys.argv[1], opt)
```
